```python
import torch

def _softmax(x, axis=-1):
    return torch.softmax(x, dim=axis)
def _gelu(x):
    return torch.nn.functional.gelu(x, approximate="tanh")
def _silu(x):
    return torch.nn.functional.silu(x)
def _sigmoid(x):
    return torch.sigmoid(x)
def _layernorm(x, axis=-1, eps=1e-5):
    m = x.mean(dim=axis, keepdim=True)
    v = x.var(dim=axis, keepdim=True, unbiased=False)
    return (x - m) / torch.sqrt(v + eps)
def _scatter_add(tgt, idx, src, axis=0):
    return tgt.clone().index_add_(axis, idx, src)
def _segment_sum(src, seg, n):
    out = torch.zeros((n,) + src.shape[1:], dtype=src.dtype)
    return out.index_add_(0, seg, src)
def _pad(x, pw):
    flat = tuple(v for pair in reversed(pw) for v in pair)
    return torch.nn.functional.pad(x, flat)

kernel_name = 'standalone__gqa_block_cached__decode'

def setup_inputs():

    _w = (lambda a: (lambda t: t.to(torch.bfloat16) if t.is_floating_point() else t)(torch.as_tensor(a)))
    B, Sq, D = 1, 1, 448
    Hq, Hkv, Sk, Dh = 16, 8, 8192, 256
    assert Hq % Hkv == 0, (Hq, Hkv)
    return {
        "x": _w((lambda *s: torch.randn(*s, dtype=torch.bfloat16) * 0.8)(B, Sq, D)),
        "k_cache": _w((lambda *s: torch.randn(*s, dtype=torch.bfloat16) * 0.8)(B, Hkv, Sk, Dh)),
        "v_cache": _w((lambda *s: torch.randn(*s, dtype=torch.bfloat16) * 0.05)(B, Hkv, Sk, Dh)),
        "wq": _w((lambda *s: torch.randn(*s, dtype=torch.bfloat16) * 0.8)(D, Hq * Dh) * (D ** -0.5)),
        "wo": _w((lambda *s: torch.randn(*s, dtype=torch.bfloat16) * 0.05)(Hq * Dh, D) * ((Hq * Dh) ** -0.5)),
    }

def reference(x, k_cache, v_cache, wq, wo):
    B, Sq, D = x.shape
    Hq, Dh = 16, 256
    Hkv = k_cache.shape[1]
    rep = Hq // Hkv
    q = (lambda x, *d: x.permute(*d))((x @ wq).reshape(B, Sq, Hq, Dh), 0, 2, 1, 3)
    k = (lambda x, n, axis: torch.repeat_interleave(x, n, dim=axis))(k_cache, rep, axis=1)
    v = (lambda x, n, axis: torch.repeat_interleave(x, n, dim=axis))(v_cache, rep, axis=1)
    scores = torch.einsum("bhqd,bhkd->bhqk", q, k) * (Dh ** -0.5)
    p = _softmax(scores, axis=-1)
    o = torch.einsum("bhqk,bhkd->bhqd", p, v)
    return (lambda x, *d: x.permute(*d))(o, 0, 2, 1, 3).reshape(B, Sq, Hq * Dh) @ wo
```

```python
import re

TRANS = ("v_exp_f32","v_log_f32","v_rcp_f32","v_rsq_f32","v_sqrt_f32","v_sin_f32","v_cos_f32")

def split_ops(s):
    out=[];depth=0;cur=""
    for ch in s:
        if ch in "[(": depth+=1
        if ch in "])": depth-=1
        if ch=="," and depth==0:
            out.append(cur.strip());cur=""
        else: cur+=ch
    if cur.strip(): out.append(cur.strip())
    return out

def regs(op):
    op=op.strip()
    op=op.lstrip("-")
    m=re.match(r"^abs\((.*)\)$",op)
    if m: op=m.group(1)
    op=op.split()[0] if op else op
    m=re.match(r"^([vsa])\[(\d+):(\d+)\]$",op)
    if m: return {(m.group(1),i) for i in range(int(m.group(2)),int(m.group(3))+1)}
    m=re.match(r"^([vsa])(\d+)$",op)
    if m: return {(m.group(1),int(m.group(2)))}
    if op in("vcc",): return {("s","vcc_lo"),("s","vcc_hi")}
    if op in("vcc_lo","vcc_hi"): return {("s",op)}
    if op=="exec": return {("s","exec_lo"),("s","exec_hi")}
    if op in("exec_lo","exec_hi","m0"): return {("s",op)}
    return set()

class Ins:
    def __init__(s,text):
        s.text=text
        t=text.strip()
        s.is_label=t.endswith(":")
        s.is_dir=t.startswith(".") or t.startswith(";") or t==""
        s.mn="";s.defs=set();s.uses=set();s.kind="other";s.dpp=False;s.srcC=set();s.store_data=set()
        if s.is_label or s.is_dir: return
        t=t.split(";")[0].strip()
        parts=t.split(None,1)
        s.mn=parts[0]
        rest=parts[1] if len(parts)>1 else ""
        ops=split_ops(rest)
        s.dpp = any(k in rest for k in ("quad_perm","row_ror","row_shr","row_shl","row_bcast","row_mirror","row_half_mirror","wave_"))
        mn=s.mn
        R=[regs(o) for o in ops]
        if mn.startswith("v_mfma"):
            s.kind="mfma"; s.defs=R[0]; s.uses=R[1]|R[2]|R[3]; s.srcC=R[3]; s.srcAB=R[1]|R[2]
        elif mn.startswith("v_permlane") and "swap" in mn:
            s.kind="valu"; s.perml=True; s.defs=R[0]|R[1]; s.uses=R[0]|R[1]
        elif mn.startswith("v_readfirstlane") or mn.startswith("v_readlane"):
            s.kind="valu"; s.rdlane=True; s.defs=R[0]; s.uses=set().union(*R[1:])
        elif mn.startswith("v_cmp"):
            s.kind="valu"; s.defs=R[0]; s.uses=set().union(*R[1:])
        elif mn.startswith("v_"):
            s.kind="valu"; s.defs=R[0]; s.uses=set().union(*R[1:]) if len(R)>1 else set()
            if mn.startswith("v_fmac") or mn.startswith("v_dot2c") or s.dpp: s.uses|=R[0]
            if mn.startswith("v_cndmask") and len(ops)==3: s.uses|=regs("vcc")
            if mn.startswith("v_add_co") or mn.startswith("v_addc_co") or mn.startswith("v_sub_co"):
                s.defs=R[0]|R[1]; s.uses=set().union(*R[2:])
        elif mn.startswith("buffer_load") or mn.startswith("global_load"):
            s.kind="vmem"; s.defs=R[0]; s.uses=set().union(*R[1:])
        elif mn.startswith("buffer_store") or mn.startswith("buffer_atomic"):
            s.kind="vmem"; s.uses=set().union(*R)
            if mn.endswith("x4") or mn.endswith("x3"): s.store_data=R[0]
        elif mn.startswith("global_store"):
            s.kind="vmem"; s.uses=set().union(*R)
            if mn.endswith("x4") or mn.endswith("x3"): s.store_data=R[1]
        elif mn.startswith("ds_read") or mn.startswith("ds_bpermute") or mn.startswith("ds_swizzle"):
            s.kind="ds"; s.defs=R[0]; s.uses=set().union(*R[1:])
        elif mn.startswith("ds_"):
            s.kind="ds"; s.uses=set().union(*R)
        elif mn.startswith("s_"):
            s.kind="salu"
            if mn in("s_nop","s_waitcnt","s_barrier","s_endpgm","s_branch","s_setprio","s_sleep") or mn.startswith("s_cbranch") or mn.startswith("s_cmp"):
                s.uses=set().union(*R) if R else set()
            else:
                s.defs=R[0] if R else set(); s.uses=set().union(*R[1:]) if len(R)>1 else set()
        s.trans = mn.replace("_e32","").replace("_e64","") in TRANS
    def states(s):
        if s.is_label or s.is_dir: return 0
        if s.mn=="s_nop": return int(s.text.split()[1],0)+1
        return 1

def vg(x): return {r for r in x if r[0] in "va"}
def sg(x): return {r for r in x if r[0]=="s"}

def need(prod,cons):
    n=0
    pv=vg(prod.defs);
    if prod.kind=="valu":
        if cons.kind=="mfma" and (pv & vg(cons.uses)): n=max(n,2)
        if cons.kind=="valu" and cons.dpp and (pv & vg(cons.uses)): n=max(n,2)
        if cons.kind=="valu" and getattr(cons,"perml",False) and (pv & vg(cons.uses)): n=max(n,2)
        if cons.kind=="valu" and getattr(cons,"rdlane",False) and (pv & vg(cons.uses)): n=max(n,1)
        if prod.trans and cons.kind in("valu","mfma") and not cons.trans and (pv & vg(cons.uses)): n=max(n,1)
        if prod.trans and cons.kind in("valu",) and cons.trans and (pv & vg(cons.uses)): n=max(n,1)
        ps=sg(prod.defs)
        if ps:
            if cons.kind=="valu" and (ps & sg(cons.uses)): n=max(n,4 if getattr(cons,"rdlane",False) else 2)
            if cons.kind=="vmem" and (ps & sg(cons.uses)): n=max(n,5)
            if cons.kind=="salu" and (ps & sg(cons.uses)): n=max(n,1)
    if prod.kind=="mfma":
        P=8 if "32x32" in prod.mn else 4
        raw={4:8,8:12}[P]; ovl={4:6,8:10}[P]; war={4:3,8:7}[P]
        if cons.kind=="mfma":
            if pv & vg(cons.srcAB): n=max(n,raw)
            if pv & vg(cons.srcC) and not (cons.srcC==prod.defs): n=max(n,ovl)
            if pv & vg(cons.defs) and not (cons.defs==prod.defs): n=max(n,ovl)
        elif cons.kind in("valu","vmem","ds"):
            if pv & (vg(cons.uses)|vg(cons.defs)): n=max(n,raw)
            if cons.kind=="valu" and (vg(prod.srcC) & vg(cons.defs)): n=max(n,war)
    if prod.kind=="vmem" and prod.store_data:
        if cons.kind=="valu" and (prod.store_data & vg(cons.defs)): n=max(n,2)
        elif cons.kind in("vmem","ds","mfma") and (prod.store_data & vg(cons.defs)): n=max(n,1)
    return n

def pad(lines, verbose=False):
    out=[]; H=[[]]; snaps={}
    total=0
    dead=False
    for ln in lines:
        ins=Ins(ln)
        if ins.is_label:
            lab=ln.strip()[:-1]
            alts=snaps.pop(lab,[])
            H=([] if dead else H)+alts
            if not H: H=[[]]
            dead=False
            out.append(ln); continue
        if ins.is_dir:
            out.append(ln); continue
        req=0
        for hist in H:
            dist=0
            for p in reversed(hist):
                r=need(p,ins)
                if r>dist: req=max(req,r-dist)
                dist+=p.states()
                if dist>=16: break
        while req>0:
            k=min(req,16)
            nop=f"s_nop {k-1}"
            out.append(nop)
            for hist in H: hist.append(Ins(nop))
            req-=k; total+=k
        out.append(ln)
        for hist in H: hist.append(ins)
        H=[h[-40:] for h in H]
        if ins.mn=="s_branch" or ins.mn.startswith("s_cbranch"):
            lab=ln.split()[1]
            snaps.setdefault(lab,[]).extend([list(h) for h in H])
            if ins.mn=="s_branch": dead=True
        if ins.mn=="s_endpgm": dead=True
        if len(H)>1 and all(len(h)>=24 and h[-24:]==H[0][-24:] for h in H): H=[H[0]]
    if verbose: print("nop states inserted:",total)
    return out
```

```python
import sys, struct
from asmlib import pad

NAME="standalone__gqa_block_cached__decode_kernel"
def f32hex(x): return "0x%08x"%struct.unpack("<I",struct.pack("<f",x))[0]

WS_EPOCH=0
WS_ML=0x6000
WS_QA=0x10000
WS_QS=0x20000
WS_OB=0x100000
WS_OC=0x200000
WS_STAMP=0x400000
WS_SIZE=0x800000
NRED=56
L_QP=0
L_QB=4096
L_MX=5120
L_LS=5184
L_OV=5248
L_FL=5312
L_RC=5376
L_OR=8192
L_TOTAL=24576

def SREG(i): return 80+2*i if i<11 else 4+2*(i-11)
def gen(stamp=None, nt=" nt", spin_limit=200000, k1=4, force_slow=False):
    o=[]; e=o.append
    nst=[0]; names=[]
    def ST(name):
        if stamp and (name in stamp):
            i=nst[0]; nst[0]+=1; names.append(name)
            r=SREG(i); e(f"s_memrealtime s[{r}:{r+1}]")
    hdr=open("standalone__gqa_block_cached__decode.s.ref").read().split("\n")
    for l in hdr:
        if l.startswith("; Kernarg") or l.startswith(";   offset"): e(l)
    e(f"; @launch grid=(256,1,1) block=(512,1,1) lds={L_TOTAL}")
    e('.amdgcn_target "amdgcn-amd-amdhsa--gfx950"')
    e(".text"); e(f".globl {NAME}"); e(".p2align 8"); e(f".type {NAME},@function"); e(f"{NAME}:")
    ST("entry")
    e("s_cmp_ge_u32 s2, 256"); e("s_cbranch_scc1 L_done")
    e("s_load_dwordx16 s[4:19], s[0:1], 0")
    e("v_and_b32 v1, 63, v0")
    e("v_lshrrev_b32 v2, 6, v0")
    e("s_and_b32 s48, s2, 7")
    e("s_lshr_b32 s49, s2, 3")
    e("v_readfirstlane_b32 s3, v2")
    e("s_getreg_b32 s62, hwreg(HW_REG_XCC_ID)")
    e("v_lshrrev_b32 v7, 4, v1")
    e("v_lshlrev_b32 v2, 6, v7")
    e("v_bfe_u32 v8, v1, 2, 2")
    e("v_lshl_add_u32 v2, v8, 9, v2")
    e("v_and_b32 v10, 3, v1")
    e("v_lshl_add_u32 v2, v10, 4, v2")
    e("v_and_b32 v8, 15, v1")
    e("v_lshlrev_b32 v3, 9, v7")
    e("v_lshl_add_u32 v3, v8, 4, v3")
    e("s_lshl_b32 s52, s48, 22"); e("s_lshl_b32 s56, s49, 17"); e("s_add_u32 s52, s52, s56")
    e("s_lshl_b32 s56, s3, 14"); e("s_add_u32 s52, s52, s56")
    e("s_add_u32 s53, s52, 4096"); e("s_add_u32 s54, s52, 8192"); e("s_add_u32 s55, s52, 12288")
    e("s_and_b32 s56, s49, 1"); e("s_mul_i32 s56, s56, 224"); e("s_lshl_b32 s57, s3, 5"); e("s_add_u32 s56, s56, s57")
    e("s_cmp_eq_u32 s3, 7"); e("s_cselect_b32 s56, 0x4000, s56")
    e("v_lshrrev_b32 v8, 2, v1")
    e("v_add_u32 v9, s56, v8")
    e("s_lshl_b32 s56, s48, 10"); e("s_lshr_b32 s57, s49, 1"); e("s_lshl_b32 s57, s57, 6"); e("s_add_u32 s56, s56, s57")
    e("v_lshlrev_b32 v4, 4, v10")
    e("v_lshl_add_u32 v4, v9, 13, v4")
    e("v_add_u32 v4, s56, v4")
    e("v_add_u32 v5, 0x20000, v4")
    e("v_lshlrev_b32 v6, 1, v9")
    e("s_and_b32 s62, s62, 7")
    e("s_waitcnt lgkmcnt(0)")
    def srd(d,lo,size):
        e(f"s_mov_b32 s{d}, s{lo}"); e(f"s_mov_b32 s{d+1}, s{lo+1}"); e(f"s_mov_b32 s{d+2}, {size}"); e(f"s_mov_b32 s{d+3}, 0x20000")
    srd(32,4,896); srd(28,10,3670016)
    e("buffer_load_ushort v128, v6, s[32:35], 0 offen")
    e("buffer_load_ushort v129, v6, s[32:35], 0 offen offset:32")
    e(f"buffer_load_dwordx4 v[132:135], v4, s[28:31], 0 offen{nt}")
    e(f"buffer_load_dwordx4 v[136:139], v5, s[28:31], 0 offen{nt}")
    srd(20,6,0x2000000)
    def kload(n):
        of=(n//2)*2048+(n%2)*256
        e(f"buffer_load_dwordx4 v[{64+4*n}:{67+4*n}], v2, s[20:23], s{52+of//4096} offen offset:{of%4096}{nt}")
    def vload(hh,ee):
        of=ee*2048+hh*256
        r=128+32*hh+4*ee
        e(f"buffer_load_dwordx4 v[{r}:{r+3}], v3, s[24:27], s{52+of//4096} offen offset:{of%4096}{nt}")
    for n in range(k1): kload(n)
    e("s_load_dword s50, s[18:19], 0")
    srd(24,8,0x2000000); srd(36,12,3670016); srd(40,18,WS_SIZE); srd(44,14,896)
    e(f"s_mov_b32 s58, {f32hex(1.4426950408889634/16)}")
    e("s_mov_b32 s59, 0x05040100"); e("s_mov_b32 s60, 0x07060302")
    for t in range(8):
        p=((1<<t)|(1<<(4+t))) if t<4 else ((1<<(8+t-4))|(1<<(12+t-4)))
        p=p*0x00010001
        e(f"s_mov_b32 s{64+2*t}, {hex(p)}"); e(f"s_mov_b32 s{65+2*t}, {hex(p)}")
    ST("setup")
    e("v_lshlrev_b32 v11, 7, v7")
    e("v_lshl_add_u32 v11, v10, 5, v11")
    e("s_lshl_b32 s56, s3, 9")
    e("v_add_u32 v11, s56, v11")
    e(f"s_waitcnt vmcnt({k1})")
    e("v_lshlrev_b32 v128, 16, v128"); e("v_lshlrev_b32 v129, 16, v129")
    for c in range(4):
        e(f"v_lshlrev_b32 v140, 16, v{132+c}"); e(f"v_and_b32 v141, 0xffff0000, v{132+c}")
        e(f"v_lshlrev_b32 v142, 16, v{136+c}"); e(f"v_and_b32 v143, 0xffff0000, v{136+c}")
        e(f"v_mul_f32 v{144+2*c}, v140, v128"); e(f"v_mul_f32 v{145+2*c}, v141, v128")
        e(f"v_fmac_f32 v{144+2*c}, v142, v129"); e(f"v_fmac_f32 v{145+2*c}, v143, v129")
    for st_ in (4,8):
        for k in range(8):
            e(f"v_add_f32_dpp v{144+k}, v{144+k}, v{144+k} row_ror:{st_} row_mask:0xf bank_mask:0xf")
    e("s_mov_b32 exec_lo, 0x000f000f"); e("s_mov_b32 exec_hi, 0x000f000f")
    e(f"ds_write_b128 v11, v[144:147] offset:{L_QP}")
    e(f"ds_write_b128 v11, v[148:151] offset:{L_QP+16}")
    e("s_mov_b64 exec, -1")
    e("s_waitcnt lgkmcnt(0)")
    e("s_add_u32 s50, s50, 1")
    e("s_lshl_b32 s51, s50, 3")
    e("s_or_b32 s63, s51, s62")
    e("s_barrier")
    e("s_cmp_lg_u32 s3, 0"); e("s_cbranch_scc1 L_noq")
    e("v_and_b32 v8, 31, v1"); e("v_lshrrev_b32 v9, 5, v1")
    e("v_lshlrev_b32 v12, 11, v9")
    e("v_lshl_add_u32 v12, v8, 2, v12")
    for k in range(16): e(f"ds_read_b32 v{144+k}, v12 offset:{L_QP+128*k}")
    e("v_lshlrev_b32 v13, 3, v8")
    e("s_lshl_b32 s56, s48, 13"); e("s_and_b32 s57, s49, 1"); e("s_lshl_b32 s57, s57, 12"); e("s_add_u32 s56, s56, s57")
    e("s_lshr_b32 s57, s49, 1"); e("s_lshl_b32 s57, s57, 8"); e("s_add_u32 s56, s56, s57")
    e(f"s_add_u32 s57, s56, {WS_QS}"); e(f"s_add_u32 s56, s56, {WS_QA}")
    e("s_waitcnt lgkmcnt(0)")
    for stp in (1,2,4,8):
        for k in range(0,16,2*stp): e(f"v_add_f32 v{144+k}, v{144+k}, v{144+k+stp}")
    e("v_mov_b32 v145, v144"); e("v_permlane32_swap_b32 v145, v144"); e("v_add_f32 v144, v144, v145")
    e("v_mov_b32_dpp v146, v144 quad_perm:[1,0,3,2] row_mask:0xf bank_mask:0xf")
    e("v_mov_b32 v145, s63"); e("v_mov_b32 v147, s63")
    e("s_mov_b32 exec_lo, 0x55555555"); e("s_mov_b32 exec_hi, 0")
    if not force_slow: e("buffer_store_dwordx4 v[144:147], v13, s[40:43], s56 offen")
    e("buffer_store_dwordx4 v[144:147], v13, s[40:43], s57 offen sc1")
    e("s_mov_b64 exec, -1")
    e("L_noq:")
    ST("qpub")
    for n in range(k1,16): kload(n)
    ST("Kiss")
    e("v_lshrrev_b32 v9, 5, v1"); e("v_lshlrev_b32 v14, 12, v9")
    e("v_and_b32 v8, 31, v1"); e("v_lshl_add_u32 v14, v8, 4, v14")
    e("s_lshl_b32 s56, s48, 13"); e("s_lshl_b32 s57, s3, 9"); e("s_add_u32 s56, s56, s57"); e(f"s_add_u32 s56, s56, {WS_QA}")
    e("s_barrier")
    e("buffer_load_dwordx4 v[192:195], v14, s[40:43], s56 offen sc1")
    for ee in range(8): vload(0,ee)
    ST("V0iss")
    e(f"s_mov_b32 s61, {spin_limit}")
    e("s_waitcnt vmcnt(8)")
    ST("Kdone")
    e("L_qchk:")
    e("v_xor_b32 v200, s63, v193"); e("v_xor_b32 v201, s63, v195"); e("v_or_b32 v200, v200, v201")
    e("v_cmp_le_u32 vcc, 8, v200")
    e("s_cbranch_vccz L_qok")
    e("s_sub_u32 s61, s61, 1"); e("s_cmp_eq_u32 s61, 0"); e("s_cbranch_scc1 L_qok")
    e(f"s_xor_b32 s56, s56, {WS_QA^WS_QS}")
    e("buffer_load_dwordx4 v[192:195], v14, s[40:43], s56 offen sc1")
    e("s_waitcnt vmcnt(0)")
    e("s_branch L_qchk")
    e("L_qok:")
    if stamp: e(f"s_sub_u32 s63, {spin_limit}, s61")
    e("v_cmp_ne_u32 vcc, 0, v200")
    e("v_mov_b32 v201, v192"); e("v_mov_b32 v202, v194")
    e("v_permlane32_swap_b32 v201, v192"); e("v_permlane32_swap_b32 v202, v194")
    e("s_cmp_lg_u64 vcc, 0"); e("s_cselect_b32 s57, 1, 0")
    if force_slow: e("s_mov_b32 s57, 1")
    e("v_add_f32 v192, v192, v201"); e("v_add_f32 v194, v194, v202")
    e("v_cvt_pk_bf16_f32 v192, v192, v194")
    e("v_mov_b32 v193, s57")
    e("s_lshl_b32 s57, s3, 7")
    e("v_lshlrev_b32 v15, 2, v8"); e("v_add_u32 v15, s57, v15")
    e("s_lshl_b32 s57, s3, 2"); e("v_mov_b32 v16, s57")
    e("s_mov_b32 exec_hi, 0")
    e(f"ds_write_b32 v15, v192 offset:{L_QB}")
    e("s_mov_b32 exec_lo, 1")
    e(f"ds_write_b32 v16, v193 offset:{L_FL}")
    e("s_mov_b64 exec, -1")
    e("v_bfe_u32 v16, v1, 2, 1")
    e("v_lshlrev_b32 v17, 9, v16")
    e("v_lshl_add_u32 v17, v7, 6, v17")
    e("v_lshl_add_u32 v17, v10, 4, v17")
    e("s_waitcnt lgkmcnt(0)")
    e("s_barrier")
    ST("B2")
    e(f"ds_read_b128 v[224:227], v17 offset:{L_QB}")
    e(f"ds_read_b128 v[228:231], v17 offset:{L_QB+256}")
    e("v_mov_b32 v8, 0")
    e(f"ds_read_b128 v[240:243], v8 offset:{L_FL}")
    e(f"ds_read_b128 v[244:247], v8 offset:{L_FL+16}")
    e("s_lshl_b32 s56, s3, 2")
    e("v_lshlrev_b32 v18, 5, v16")
    e("v_add_u32 v19, s56, v18")
    e("s_waitcnt lgkmcnt(0)")
    for n in range(8):
        e(f"v_mfma_f32_16x16x32_bf16 v[{192+4*n}:{195+4*n}], v[{64+8*n}:{67+8*n}], v[224:227], 0")
    e("v_or3_b32 v240, v240, v241, v242"); e("v_or3_b32 v244, v244, v245, v246"); e("v_or3_b32 v240, v240, v243, v247"); e("v_or_b32 v240, v240, v244")
    for n in range(8):
        e(f"v_mfma_f32_16x16x32_bf16 v[{192+4*n}:{195+4*n}], v[{68+8*n}:{71+8*n}], v[228:231], v[{192+4*n}:{195+4*n}]")
    e("v_readfirstlane_b32 s62, v240")
    for n in range(8):
        e(f"v_mov_b32_dpp v{232+n}, v{192+4*n} quad_perm:[0,0,0,0] row_mask:0xf bank_mask:0xf")
    for r in (1,2,3):
        for n in range(8):
            e(f"v_add_f32_dpp v{232+n}, v{192+4*n+r}, v{232+n} quad_perm:[{r},{r},{r},{r}] row_mask:0xf bank_mask:0xf")
    e("v_max3_f32 v240, v232, v233, v234"); e("v_max3_f32 v241, v235, v236, v237"); e("v_max3_f32 v240, v240, v238, v239"); e("v_max_f32 v240, v240, v241")
    e("v_mov_b32 v241, v240"); e("v_permlane16_swap_b32 v241, v240"); e("v_max_f32 v240, v240, v241")
    e("v_mov_b32 v241, v240"); e("v_permlane32_swap_b32 v241, v240"); e("v_max_f32 v240, v240, v241")
    e("s_mov_b32 exec_lo, 0x11"); e("s_mov_b32 exec_hi, 0")
    e(f"ds_write_b32 v19, v240 offset:{L_MX}")
    e("s_mov_b64 exec, -1")
    e("s_waitcnt lgkmcnt(0)")
    e("s_barrier")
    e(f"ds_read_b128 v[192:195], v18 offset:{L_MX}")
    e(f"ds_read_b128 v[196:199], v18 offset:{L_MX+16}")
    e("s_waitcnt lgkmcnt(0)")
    e("v_max3_f32 v240, v192, v193, v194"); e("v_max3_f32 v241, v195, v196, v197"); e("v_max3_f32 v240, v240, v198, v199"); e("v_max_f32 v240, v240, v241")
    e("v_mul_f32 v240, s58, v240")
    for n in range(8): e(f"v_fma_f32 v{232+n}, v{232+n}, s58, -v240")
    for n in range(8): e(f"v_exp_f32 v{232+n}, v{232+n}")
    for u in range(4): e(f"v_cvt_pk_bf16_f32 v{244+u}, v{232+2*u}, v{233+2*u}")
    for u in range(4): e(f"v_mov_b32 v{248+u}, 0x3f803f80")
    for t in range(8):
        for u in range(4):
            e(f"v_cndmask_b32 v{64+4*t+u}, 0, v{244+u}, s[{64+2*t}:{65+2*t}]")
    e("v_mfma_f32_16x16x32_bf16 v[120:123], v[248:251], v[244:247], 0")
    ST("soft")
    for ee in range(8): vload(1,ee)
    e("v_lshrrev_b32 v20, 5, v1")
    e("v_mul_u32_u24 v20, 7168, v20")
    e("v_and_b32 v8, 31, v1")
    e("v_lshl_add_u32 v20, v8, 2, v20")
    e("s_lshl_b32 s56, s48, 9"); e("s_lshl_b32 s57, s49, 4"); e("s_add_u32 s56, s56, s57"); e("s_mul_i32 s56, s56, 896")
    e("s_lshl_b32 s57, s3, 7"); e("s_add_u32 s56, s56, s57")
    e("v_add_u32 v20, s56, v20")
    for r8 in range(8):
        of=r8*896
        if of<4096: e(f"buffer_load_dword v{192+r8}, v20, s[36:39], 0 offen offset:{of}{nt}")
        else:
            if r8==5: e("v_add_u32 v20, 4096, v20")
            e(f"buffer_load_dword v{192+r8}, v20, s[36:39], 0 offen offset:{of-4096}{nt}")
    e("s_mov_b32 exec_lo, 0x11"); e("s_mov_b32 exec_hi, 0")
    e(f"ds_write_b32 v19, v120 offset:{L_LS}")
    e("s_mov_b64 exec, -1")
    ST("V1iss")
    def pv(hh):
        acc=112+4*hh
        base=128+32*hh
        first=True
        for c in range(4):
            tb=96+8*(c%2)
            for u in range(4):
                e(f"v_perm_b32 v{tb+u}, v{base+4*(2*u+1)+c}, v{base+4*(2*u)+c}, s59")
            for u in range(4):
                e(f"v_perm_b32 v{tb+4+u}, v{base+4*(2*u+1)+c}, v{base+4*(2*u)+c}, s60")
            for par in range(2):
                t=2*c+par
                C="0" if first else f"v[{acc}:{acc+3}]"
                e(f"v_mfma_f32_16x16x32_bf16 v[{acc}:{acc+3}], v[{tb+4*par}:{tb+4*par+3}], v[{64+4*t}:{67+4*t}], {C}")
                first=False
    e("s_waitcnt vmcnt(16)")
    pv(0)
    e("s_lshl_b32 s56, s3, 11")
    e("v_lshlrev_b32 v21, 2, v1")
    e("v_add_u32 v22, s56, v21")
    for r in range(4): e(f"ds_write_b32 v22, v{112+r} offset:{L_OR+r*256}")
    e("v_lshlrev_b32 v23, 16, v16")
    e("v_lshl_add_u32 v23, v7, 13, v23")
    e("v_bfe_u32 v8, v1, 3, 1"); e("v_lshl_add_u32 v23, v8, 5, v23")
    e("v_lshl_add_u32 v23, v10, 3, v23")
    e("s_lshl_b32 s56, s48, 17"); e("s_lshl_b32 s57, s49, 7"); e("s_add_u32 s56, s56, s57"); e(f"s_add_u32 s56, s56, {WS_OB}")
    e("s_lshr_b32 s57, s3, 2"); e("s_lshl_b32 s57, s57, 15"); e("s_add_u32 s56, s56, s57")
    e("s_bfe_u32 s57, s3, 0x10001"); e("s_lshl_b32 s57, s57, 12"); e("s_add_u32 s56, s56, s57")
    e("s_and_b32 s57, s3, 1"); e("s_lshl_b32 s57, s57, 6"); e("s_add_u32 s56, s56, s57")
    e("s_lshl_b32 s57, s3, 8")
    e("v_add_u32 v24, s57, v21")
    e("v_mov_b32 v253, s51")
    e("s_waitcnt vmcnt(8)")
    ST("V1done")
    pv(1)
    for r in range(4): e(f"ds_write_b32 v22, v{116+r} offset:{L_OR+1024+r*256}")
    e("s_waitcnt lgkmcnt(0)")
    e("s_barrier")
    for k in range(8): e(f"ds_read_b32 v{96+k}, v24 offset:{L_OR+2048*k}")
    e("s_cmp_lg_u32 s3, 1"); e("s_cbranch_scc1 L_noml")
    e(f"ds_read_b128 v[108:111], v18 offset:{L_LS}")
    e(f"ds_read_b128 v[124:127], v18 offset:{L_LS+16}")
    e("L_noml:")
    e("s_waitcnt lgkmcnt(0)")
    e("v_add_f32 v96, v96, v97"); e("v_add_f32 v98, v98, v99"); e("v_add_f32 v100, v100, v101"); e("v_add_f32 v102, v102, v103")
    e("v_add_f32 v96, v96, v98"); e("v_add_f32 v100, v100, v102"); e("v_add_f32 v252, v96, v100")
    e("s_cmp_lg_u32 s62, 0"); e("s_cbranch_scc1 L_pubslow")
    e("buffer_store_dwordx2 v[252:253], v23, s[40:43], s56 offen")
    e("s_branch L_pubdone")
    e("L_pubslow:")
    e("buffer_store_dwordx2 v[252:253], v23, s[40:43], s56 offen sc1")
    e("L_pubdone:")
    e("s_cmp_lg_u32 s3, 1"); e("s_cbranch_scc1 L_noml2")
    e("v_add_f32 v108, v108, v109"); e("v_add_f32 v110, v110, v111"); e("v_add_f32 v124, v124, v125"); e("v_add_f32 v126, v126, v127")
    e("v_add_f32 v108, v108, v110"); e("v_add_f32 v124, v124, v126"); e("v_add_f32 v126, v108, v124")
    e("v_mov_b32 v124, v240"); e("v_mov_b32 v125, s51"); e("v_mov_b32 v127, s51")
    e("v_lshlrev_b32 v8, 9, v16")
    e("s_lshl_b32 s57, s48, 10"); e("s_lshl_b32 s63, s49, 4"); e("s_add_u32 s57, s57, s63"); e(f"s_add_u32 s57, s57, {WS_ML}")
    e("s_mov_b32 exec_lo, 0x11"); e("s_mov_b32 exec_hi, 0")
    e("s_cmp_lg_u32 s62, 0"); e("s_cbranch_scc1 L_mlslow")
    e("buffer_store_dwordx4 v[124:127], v8, s[40:43], s57 offen")
    e("s_branch L_mldone")
    e("L_mlslow:")
    e("buffer_store_dwordx4 v[124:127], v8, s[40:43], s57 offen sc1")
    e("L_mldone:")
    e("s_mov_b64 exec, -1")
    e("L_noml2:")
    ST("pub")
    e("s_cmp_lg_u32 s3, 0"); e("s_cbranch_scc1 L_nob")
    e("v_bfe_u32 v8, v1, 1, 4"); e("v_lshlrev_b32 v25, 7, v8")
    e("v_lshrrev_b32 v9, 5, v1"); e("v_lshl_add_u32 v25, v9, 6, v25")
    e("v_and_b32 v9, 1, v1"); e("v_lshl_add_u32 v25, v9, 5, v25")
    e("v_lshlrev_b32 v26, 4, v8")
    e("s_lshl_b32 s56, s48, 17"); e("s_lshl_b32 s57, s49, 12"); e("s_add_u32 s56, s56, s57"); e(f"s_add_u32 s56, s56, {WS_OB}")
    e("s_lshl_b32 s57, s48, 1"); e("s_lshr_b32 s63, s49, 4"); e("s_add_u32 s57, s57, s63"); e("s_lshl_b32 s57, s57, 9"); e(f"s_add_u32 s57, s57, {WS_ML}")
    e(f"s_mov_b32 s61, {spin_limit}")
    ST("Bstart")
    e("s_mov_b32 s63, 0")
    e("L_bpoll:")
    e("s_add_u32 s63, s63, 1")
    e("buffer_load_dwordx4 v[128:131], v25, s[40:43], s56 offen sc1")
    e("buffer_load_dwordx4 v[132:135], v25, s[40:43], s56 offen offset:16 sc1")
    e("buffer_load_dwordx4 v[136:139], v25, s[40:43], s56 offen offset:2048 sc1")
    e("buffer_load_dwordx4 v[140:143], v25, s[40:43], s56 offen offset:2064 sc1")
    e("buffer_load_dwordx4 v[144:147], v26, s[40:43], s57 offen sc1")
    e("buffer_load_dwordx4 v[148:151], v26, s[40:43], s57 offen offset:256 sc1")
    e("s_waitcnt vmcnt(0)")
    if stamp and "Bfirst" in stamp:
        e("s_cmp_lg_u32 s63, 1"); e("s_cbranch_scc1 L_nf"); ST("Bfirst"); e("L_nf:")
    e("v_min3_u32 v152, v129, v131, v133"); e("v_max3_u32 v153, v129, v131, v133")
    for a,b in ((135,137),(139,141),(143,145),(147,149)):
        e(f"v_min3_u32 v152, v152, v{a}, v{b}"); e(f"v_max3_u32 v153, v153, v{a}, v{b}")
    e("v_min_u32 v152, v152, v151"); e("v_max_u32 v153, v153, v151")
    e("v_xor_b32 v152, s51, v152"); e("v_xor_b32 v153, s51, v153"); e("v_or_b32 v152, v152, v153")
    e("v_cmp_ne_u32 vcc, 0, v152")
    e("s_cbranch_vccz L_bok")
    e("s_sub_u32 s61, s61, 1"); e("s_cmp_lg_u32 s61, 0"); e("s_cbranch_scc1 L_bpoll")
    e("L_bok:")
    ST("Bok")
    def allred(op,reg,tmp):
        for s_ in (2,4,8):
            e(f"{op}_dpp v{reg}, v{reg}, v{reg} row_ror:{s_} row_mask:0xf bank_mask:0xf")
        e(f"v_mov_b32 v{tmp}, v{reg}"); e(f"v_permlane16_swap_b32 v{tmp}, v{reg}"); e(f"{op} v{reg}, v{reg}, v{tmp}")
    e("v_max_f32 v152, v144, v148")
    allred("v_max_f32",152,153)
    e("v_sub_f32 v144, v144, v152"); e("v_sub_f32 v148, v148, v152")
    e("v_exp_f32 v144, v144"); e("v_exp_f32 v148, v148")
    e("v_mul_f32 v154, v144, v146"); e("v_fmac_f32 v154, v148, v150")
    for k in range(4): e(f"v_mul_f32 v{156+k}, v144, v{128+2*k}")
    for k in range(4): e(f"v_fmac_f32 v{156+k}, v148, v{136+2*k}")
    vals=[154,156,157,158,159]
    for s_ in (2,4,8):
        for r in vals: e(f"v_add_f32_dpp v{r}, v{r}, v{r} row_ror:{s_} row_mask:0xf bank_mask:0xf")
    for i,r in enumerate(vals): e(f"v_mov_b32 v{160+i}, v{r}")
    for i,r in enumerate(vals): e(f"v_permlane16_swap_b32 v{160+i}, v{r}")
    for i,r in enumerate(vals): e(f"v_add_f32 v{r}, v{r}, v{160+i}")
    e("v_rcp_f32 v154, v154")
    for k in range(4): e(f"v_mul_f32 v{156+k}, v{156+k}, v154")
    e("v_cvt_pk_bf16_f32 v160, v156, v157"); e("v_cvt_pk_bf16_f32 v161, v158, v159")
    e("v_lshlrev_b32 v156, 16, v160"); e("v_and_b32 v157, 0xffff0000, v160")
    e("v_lshlrev_b32 v158, 16, v161"); e("v_and_b32 v159, 0xffff0000, v161")
    e("v_lshrrev_b32 v8, 5, v1"); e("v_lshlrev_b32 v8, 5, v8"); e("v_lshl_add_u32 v8, v9, 4, v8")
    e("s_mov_b32 exec_lo, 3"); e("s_mov_b32 exec_hi, 3")
    e(f"ds_write_b128 v8, v[156:159] offset:{L_OV}")
    e("s_mov_b64 exec, -1")
    e("L_nob:")
    e("s_waitcnt vmcnt(0)")
    for r8 in range(8):
        e(f"v_lshlrev_b32 v{200+2*r8}, 16, v{192+r8}"); e(f"v_and_b32 v{201+2*r8}, 0xffff0000, v{192+r8}")
    e("v_lshrrev_b32 v8, 5, v1"); e("v_lshlrev_b32 v8, 5, v8")
    e("v_lshrrev_b32 v27, 2, v1"); e("v_lshlrev_b32 v27, 14, v27")
    e("v_lshl_add_u32 v27, v10, 4, v27")
    e("s_lshl_b32 s56, s3, 17"); e("s_lshl_b32 s57, s48, 11"); e("s_add_u32 s56, s56, s57"); e("s_lshl_b32 s57, s49, 6"); e("s_add_u32 s56, s56, s57"); e(f"s_add_u32 s56, s56, {WS_OC}")
    e("v_mov_b32 v105, s51"); e("v_mov_b32 v107, s51")
    e("s_waitcnt lgkmcnt(0)")
    e("s_barrier")
    ST("B5")
    e("s_cmp_eq_u32 s3, 7"); e("s_cbranch_scc1 L_stageC")
    e(f"ds_read_b128 v[96:99], v8 offset:{L_OV}")
    e(f"ds_read_b128 v[100:103], v8 offset:{L_OV+16}")
    e("s_waitcnt lgkmcnt(0)")
    e("v_mul_f32 v104, v96, v200"); e("v_mul_f32 v106, v96, v201")
    for r8 in range(1,8):
        e(f"v_fmac_f32 v104, v{96+r8}, v{200+2*r8}"); e(f"v_fmac_f32 v106, v{96+r8}, v{201+2*r8}")
    e("v_mov_b32 v108, v104"); e("v_mov_b32 v109, v106")
    e("v_permlane32_swap_b32 v108, v104"); e("v_permlane32_swap_b32 v109, v106")
    e("v_add_f32 v104, v104, v108"); e("v_add_f32 v106, v106, v109")
    e("s_mov_b32 exec_hi, 0")
    e("buffer_store_dwordx4 v[104:107], v27, s[40:43], s56 offen sc1")
    e("s_mov_b64 exec, -1")
    ST("Cpub")
    e("L_stageC:")
    e(f"s_cmp_ge_u32 s2, {NRED}"); e("s_cbranch_scc1 L_end")
    e("s_lshl_b32 s56, s2, 14"); e("s_lshl_b32 s57, s3, 11"); e("s_add_u32 s56, s56, s57"); e(f"s_add_u32 s56, s56, {WS_OC}")
    e("v_lshlrev_b32 v14, 4, v1")
    e(f"s_mov_b32 s61, {spin_limit}")
    e("L_cpoll:")
    e("buffer_load_dwordx4 v[128:131], v14, s[40:43], s56 offen sc1")
    e("buffer_load_dwordx4 v[132:135], v14, s[40:43], s56 offen offset:1024 sc1")
    e("s_waitcnt vmcnt(0)")
    e("v_min3_u32 v96, v129, v131, v133"); e("v_max3_u32 v97, v129, v131, v133")
    e("v_min_u32 v96, v96, v135"); e("v_max_u32 v97, v97, v135")
    e("v_xor_b32 v96, s51, v96"); e("v_xor_b32 v97, s51, v97"); e("v_or_b32 v96, v96, v97")
    e("v_cmp_ne_u32 vcc, 0, v96")
    e("s_cbranch_vccz L_cok")
    e("s_sub_u32 s61, s61, 1"); e("s_cmp_lg_u32 s61, 0"); e("s_cbranch_scc1 L_cpoll")
    e("L_cok:")
    ST("Cok")
    e("v_add_f32 v128, v128, v132"); e("v_add_f32 v130, v130, v134")
    for s_ in (4,8):
        e(f"v_add_f32_dpp v128, v128, v128 row_ror:{s_} row_mask:0xf bank_mask:0xf")
        e(f"v_add_f32_dpp v130, v130, v130 row_ror:{s_} row_mask:0xf bank_mask:0xf")
    for sw in ("16","32"):
        e("v_mov_b32 v96, v128"); e("v_mov_b32 v97, v130")
        e(f"v_permlane{sw}_swap_b32 v96, v128"); e(f"v_permlane{sw}_swap_b32 v97, v130")
        e("v_add_f32 v128, v128, v96"); e("v_add_f32 v130, v130, v97")
    e("v_mov_b32 v129, v130")
    e("s_lshl_b32 s57, s3, 5"); e("v_lshlrev_b32 v99, 3, v1"); e("v_add_u32 v98, s57, v99")
    e("s_mov_b32 exec_lo, 0xf"); e("s_mov_b32 exec_hi, 0")
    e(f"ds_write_b64 v98, v[128:129] offset:{L_RC}")
    e("s_mov_b64 exec, -1")
    e("s_waitcnt lgkmcnt(0)")
    e("s_barrier")
    e("s_cmp_lg_u32 s3, 0"); e("s_cbranch_scc1 L_end")
    e("s_mov_b32 exec_lo, 0xf"); e("s_mov_b32 exec_hi, 0")
    for k in range(8): e(f"ds_read_b64 v[{128+2*k}:{129+2*k}], v99 offset:{L_RC+32*k}")
    e("s_lshl_b32 s57, s2, 4")
    e("v_lshlrev_b32 v99, 2, v1")
    e("s_waitcnt lgkmcnt(0)")
    for stp in (2,4,8):
        for k in range(0,16,2*stp):
            e(f"v_add_f32 v{128+k}, v{128+k}, v{128+k+stp}"); e(f"v_add_f32 v{129+k}, v{129+k}, v{129+k+stp}")
    e("v_cvt_pk_bf16_f32 v98, v128, v129")
    e("buffer_store_dword v98, v99, s[44:47], s57 offen")
    e("s_cmp_lg_u32 s2, 0"); e("s_cbranch_scc1 L_end")
    e("s_mov_b32 exec_lo, 1")
    e("v_mov_b32 v100, s50"); e("v_mov_b32 v101, 0")
    e("buffer_store_dword v100, v101, s[40:43], 0 offen sc1")
    e("L_end:")
    if stamp:
        ST("end")
        n=nst[0]
        e("s_mov_b64 exec, -1")
        e("s_waitcnt lgkmcnt(0)")
        e("s_lshl_b32 s56, s2, 3"); e("s_add_u32 s56, s56, s3"); e("s_lshl_b32 s56, s56, 6"); e(f"s_add_u32 s56, s56, {WS_STAMP}")
        for i in range(16):
            e(f"v_mov_b32 v{96+i}, s{SREG(i)}" if i<n else (f"v_mov_b32 v{96+i}, s63" if i==15 else f"v_mov_b32 v{96+i}, 0"))
        e("v_mov_b32 v112, 0")
        e("s_mov_b32 exec_lo, 1"); e("s_mov_b32 exec_hi, 0")
        for q in range(4):
            e(f"buffer_store_dwordx4 v[{96+4*q}:{99+4*q}], v112, s[40:43], s56 offen offset:{16*q}")
    e("L_done:"); e("s_endpgm")
    e('.section .rodata,"a"'); e(".p2align 6"); e(f".amdhsa_kernel {NAME}")
    e("  .amdhsa_next_free_vgpr 256"); e(f"  .amdhsa_next_free_sgpr {102 if stamp else 96}"); e("  .amdhsa_accum_offset 256")
    e("  .amdhsa_group_segment_fixed_size 0"); e("  .amdhsa_kernarg_size 64"); e("  .amdhsa_user_sgpr_count 2")
    e("  .amdhsa_user_sgpr_kernarg_segment_ptr 1"); e("  .amdhsa_system_sgpr_workgroup_id_x 1"); e(".end_amdhsa_kernel")
    if stamp: open("stampnames.txt","w").write(",".join(names))
    return "\n".join(pad(o,verbose=True))+"\n"

STAMPS=["entry","setup","qpub","Kiss","Kdone","B2","soft","V1done","pub","Bfirst","Bok","B5","Cpub","Cok","end"]
if __name__=="__main__":
    from build import build
    open("k2.s","w").write(gen()); build("k2.s","k2.co")
    open("k2slow.s","w").write(gen(force_slow=True)); build("k2slow.s","k2slow.co")
    open("k2s.s","w").write(gen(stamp=STAMPS)); build("k2s.s","k2s.co")
```

```python
import sys, struct
from asmlib import pad

NAME="standalone__gqa_block_cached__decode_kernel"
def f32hex(x): return "0x%08x"%struct.unpack("<I",struct.pack("<f",x))[0]

WS_EPOCH=0
WS_ML=0x6000
WS_QA=0x10000
WS_QS=0x20000
WS_OB=0x100000
WS_OC=0x200000
WS_STAMP=0x400000
WS_SIZE=0x800000
NRED=56
L_QP=0
L_QB=4096
L_MX=5120
L_LS=5184
L_OV=5248
L_FL=5312
L_RC=5376
L_OR=8192
L_TOTAL=24576

def SREG(i): return 80+2*i if i<10 else 4+2*(i-10)
def gen(stamp=None, nt=" nt", spin_limit=200000, k1=4, force_slow=False, dbg=False):
    o=[]; e=o.append
    nst=[0]; names=[]
    def ST(name):
        if stamp and (name in stamp):
            i=nst[0]; nst[0]+=1; names.append(name)
            r=SREG(i); e(f"s_memrealtime s[{r}:{r+1}]")
    hdr=open("standalone__gqa_block_cached__decode.s.ref").read().split("\n")
    for l in hdr:
        if l.startswith("; Kernarg") or l.startswith(";   offset"): e(l)
    e(f"; @launch grid=(256,1,1) block=(512,1,1) lds={L_TOTAL}")
    e('.amdgcn_target "amdgcn-amd-amdhsa--gfx950"')
    e(".text"); e(f".globl {NAME}"); e(".p2align 8"); e(f".type {NAME},@function"); e(f"{NAME}:")
    ST("entry")
    e("s_cmp_ge_u32 s2, 256"); e("s_cbranch_scc1 L_done")
    e("s_load_dwordx16 s[4:19], s[0:1], 0")
    e("v_and_b32 v1, 63, v0")
    e("v_lshrrev_b32 v2, 6, v0")
    e("s_and_b32 s48, s2, 7")
    e("s_lshr_b32 s49, s2, 3")
    e("v_readfirstlane_b32 s3, v2")
    e("s_getreg_b32 s62, hwreg(HW_REG_XCC_ID)")
    e("v_lshrrev_b32 v7, 4, v1")
    e("v_lshlrev_b32 v2, 6, v7")
    e("v_bfe_u32 v8, v1, 2, 2")
    e("v_lshl_add_u32 v2, v8, 9, v2")
    e("v_and_b32 v10, 3, v1")
    e("v_lshl_add_u32 v2, v10, 4, v2")
    e("v_and_b32 v8, 15, v1")
    e("v_lshlrev_b32 v3, 9, v7")
    e("v_lshl_add_u32 v3, v8, 4, v3")
    e("s_lshl_b32 s52, s48, 22"); e("s_lshl_b32 s56, s49, 17"); e("s_add_u32 s52, s52, s56")
    e("s_lshl_b32 s56, s3, 14"); e("s_add_u32 s52, s52, s56")
    e("s_add_u32 s53, s52, 4096"); e("s_add_u32 s54, s52, 8192"); e("s_add_u32 s55, s52, 12288")
    e("s_and_b32 s56, s49, 1"); e("s_mul_i32 s56, s56, 224"); e("s_lshl_b32 s57, s3, 5"); e("s_add_u32 s56, s56, s57")
    e("s_cmp_eq_u32 s3, 7"); e("s_cselect_b32 s56, 0x4000, s56")
    e("v_lshrrev_b32 v8, 2, v1")
    e("v_add_u32 v9, s56, v8")
    e("s_lshl_b32 s56, s48, 10"); e("s_lshr_b32 s57, s49, 1"); e("s_lshl_b32 s57, s57, 6"); e("s_add_u32 s56, s56, s57")
    e("v_lshlrev_b32 v4, 4, v10")
    e("v_lshl_add_u32 v4, v9, 13, v4")
    e("v_add_u32 v4, s56, v4")
    e("v_add_u32 v5, 0x20000, v4")
    e("v_lshlrev_b32 v6, 1, v9")
    e("s_and_b32 s62, s62, 7")
    e("s_waitcnt lgkmcnt(0)")
    def srd(d,lo,size):
        e(f"s_mov_b32 s{d}, s{lo}"); e(f"s_mov_b32 s{d+1}, s{lo+1}"); e(f"s_mov_b32 s{d+2}, {size}"); e(f"s_mov_b32 s{d+3}, 0x20000")
    srd(32,4,896); srd(28,10,3670016)
    e("buffer_load_ushort v128, v6, s[32:35], 0 offen")
    e("buffer_load_ushort v129, v6, s[32:35], 0 offen offset:32")
    e(f"buffer_load_dwordx4 v[132:135], v4, s[28:31], 0 offen{nt}")
    e(f"buffer_load_dwordx4 v[136:139], v5, s[28:31], 0 offen{nt}")
    srd(20,6,0x2000000)
    def kload(n):
        of=(n//2)*2048+(n%2)*256
        e(f"buffer_load_dwordx4 v[{64+4*n}:{67+4*n}], v2, s[20:23], s{52+of//4096} offen offset:{of%4096}{nt}")
    def vload(hh,ee):
        of=ee*2048+hh*256
        r=128+32*hh+4*ee
        e(f"buffer_load_dwordx4 v[{r}:{r+3}], v3, s[24:27], s{52+of//4096} offen offset:{of%4096}{nt}")
    for n in range(k1): kload(n)
    e("s_load_dword s50, s[18:19], 0")
    srd(24,8,0x2000000); srd(36,12,3670016); srd(40,18,WS_SIZE); srd(44,14,896)
    if dbg: e("s_mov_b32 s100, s16"); e("s_mov_b32 s101, s17")
    e(f"s_mov_b32 s58, {f32hex(1.4426950408889634/16)}")
    e("s_mov_b32 s59, 0x05040100"); e("s_mov_b32 s60, 0x07060302")
    for t in range(8):
        p=((1<<t)|(1<<(4+t))) if t<4 else ((1<<(8+t-4))|(1<<(12+t-4)))
        p=p*0x00010001
        e(f"s_mov_b32 s{64+2*t}, {hex(p)}"); e(f"s_mov_b32 s{65+2*t}, {hex(p)}")
    ST("setup")
    e("v_lshlrev_b32 v11, 7, v7")
    e("v_lshl_add_u32 v11, v10, 5, v11")
    e("s_lshl_b32 s56, s3, 9")
    e("v_add_u32 v11, s56, v11")
    e(f"s_waitcnt vmcnt({k1})")
    e("v_lshlrev_b32 v128, 16, v128"); e("v_lshlrev_b32 v129, 16, v129")
    for c in range(4):
        e(f"v_lshlrev_b32 v140, 16, v{132+c}"); e(f"v_and_b32 v141, 0xffff0000, v{132+c}")
        e(f"v_lshlrev_b32 v142, 16, v{136+c}"); e(f"v_and_b32 v143, 0xffff0000, v{136+c}")
        e(f"v_mul_f32 v{144+2*c}, v140, v128"); e(f"v_mul_f32 v{145+2*c}, v141, v128")
        e(f"v_fmac_f32 v{144+2*c}, v142, v129"); e(f"v_fmac_f32 v{145+2*c}, v143, v129")
    for st_ in (4,8):
        for k in range(8):
            e(f"v_add_f32_dpp v{144+k}, v{144+k}, v{144+k} row_ror:{st_} row_mask:0xf bank_mask:0xf")
    e("s_mov_b32 exec_lo, 0x000f000f"); e("s_mov_b32 exec_hi, 0x000f000f")
    e(f"ds_write_b128 v11, v[144:147] offset:{L_QP}")
    e(f"ds_write_b128 v11, v[148:151] offset:{L_QP+16}")
    e("s_mov_b64 exec, -1")
    e("s_waitcnt lgkmcnt(0)")
    e("s_add_u32 s50, s50, 1")
    e("s_lshl_b32 s51, s50, 3")
    e("s_or_b32 s63, s51, s62")
    e("s_barrier")
    e("s_cmp_lg_u32 s3, 0"); e("s_cbranch_scc1 L_noq")
    e("v_and_b32 v8, 31, v1"); e("v_lshrrev_b32 v9, 5, v1")
    e("v_lshlrev_b32 v12, 11, v9")
    e("v_lshl_add_u32 v12, v8, 2, v12")
    for k in range(16): e(f"ds_read_b32 v{144+k}, v12 offset:{L_QP+128*k}")
    e("v_lshlrev_b32 v13, 3, v8")
    e("s_lshl_b32 s56, s48, 13"); e("s_and_b32 s57, s49, 1"); e("s_lshl_b32 s57, s57, 12"); e("s_add_u32 s56, s56, s57")
    e("s_lshr_b32 s57, s49, 1"); e("s_lshl_b32 s57, s57, 8"); e("s_add_u32 s56, s56, s57")
    e(f"s_add_u32 s57, s56, {WS_QS}"); e(f"s_add_u32 s56, s56, {WS_QA}")
    e("s_waitcnt lgkmcnt(0)")
    for stp in (1,2,4,8):
        for k in range(0,16,2*stp): e(f"v_add_f32 v{144+k}, v{144+k}, v{144+k+stp}")
    e("v_mov_b32 v145, v144"); e("v_permlane32_swap_b32 v145, v144"); e("v_add_f32 v144, v144, v145")
    e("v_mov_b32_dpp v146, v144 quad_perm:[1,0,3,2] row_mask:0xf bank_mask:0xf")
    e("v_mov_b32 v145, s63"); e("v_mov_b32 v147, s63")
    e("s_mov_b32 exec_lo, 0x55555555"); e("s_mov_b32 exec_hi, 0")
    if not force_slow: e("buffer_store_dwordx4 v[144:147], v13, s[40:43], s56 offen")
    e("buffer_store_dwordx4 v[144:147], v13, s[40:43], s57 offen sc1")
    e("s_mov_b64 exec, -1")
    e("L_noq:")
    ST("qpub")
    for n in range(k1,16): kload(n)
    ST("Kiss")
    e("v_lshrrev_b32 v9, 5, v1"); e("v_lshlrev_b32 v14, 12, v9")
    e("v_and_b32 v8, 31, v1"); e("v_lshl_add_u32 v14, v8, 4, v14")
    e("s_lshl_b32 s56, s48, 13"); e("s_lshl_b32 s57, s3, 9"); e("s_add_u32 s56, s56, s57"); e(f"s_add_u32 s56, s56, {WS_QA}")
    e("s_barrier")
    e("buffer_load_dwordx4 v[192:195], v14, s[40:43], s56 offen sc1")
    for ee in range(8): vload(0,ee)
    ST("V0iss")
    e(f"s_mov_b32 s61, {spin_limit}")
    e("s_waitcnt vmcnt(8)")
    ST("Kdone")
    e("L_qchk:")
    e("v_xor_b32 v200, s63, v193"); e("v_xor_b32 v201, s63, v195"); e("v_or_b32 v200, v200, v201")
    e("v_cmp_le_u32 vcc, 8, v200")
    e("s_cbranch_vccz L_qok")
    e("s_sub_u32 s61, s61, 1"); e("s_cmp_eq_u32 s61, 0"); e("s_cbranch_scc1 L_qok")
    e(f"s_xor_b32 s56, s56, {WS_QA^WS_QS}")
    e("buffer_load_dwordx4 v[192:195], v14, s[40:43], s56 offen sc1")
    e("s_waitcnt vmcnt(0)")
    e("s_branch L_qchk")
    e("L_qok:")
    if stamp: e(f"s_sub_u32 s63, {spin_limit}, s61")
    e("v_cmp_ne_u32 vcc, 0, v200")
    e("v_mov_b32 v201, v192"); e("v_mov_b32 v202, v194")
    e("v_permlane32_swap_b32 v201, v192"); e("v_permlane32_swap_b32 v202, v194")
    e("s_cmp_lg_u64 vcc, 0"); e("s_cselect_b32 s57, 1, 0")
    if force_slow: e("s_mov_b32 s57, 1")
    e("v_add_f32 v192, v192, v201"); e("v_add_f32 v194, v194, v202")
    e("v_cvt_pk_bf16_f32 v192, v192, v194")
    e("v_mov_b32 v193, s57")
    e("s_lshl_b32 s57, s3, 7")
    e("v_lshlrev_b32 v15, 2, v8"); e("v_add_u32 v15, s57, v15")
    e("s_lshl_b32 s57, s3, 2"); e("v_mov_b32 v16, s57")
    e("s_mov_b32 exec_hi, 0")
    e(f"ds_write_b32 v15, v192 offset:{L_QB}")
    e("s_mov_b32 exec_lo, 1")
    e(f"ds_write_b32 v16, v193 offset:{L_FL}")
    e("s_mov_b64 exec, -1")
    e("v_bfe_u32 v16, v1, 2, 1")
    e("v_lshlrev_b32 v17, 9, v16")
    e("v_lshl_add_u32 v17, v7, 6, v17")
    e("v_lshl_add_u32 v17, v10, 4, v17")
    e("s_waitcnt lgkmcnt(0)")
    e("s_barrier")
    ST("B2")
    e(f"ds_read_b128 v[224:227], v17 offset:{L_QB}")
    e(f"ds_read_b128 v[228:231], v17 offset:{L_QB+256}")
    e("v_mov_b32 v8, 0")
    e(f"ds_read_b128 v[240:243], v8 offset:{L_FL}")
    e(f"ds_read_b128 v[244:247], v8 offset:{L_FL+16}")
    e("s_lshl_b32 s56, s3, 2")
    e("v_lshlrev_b32 v18, 5, v16")
    e("v_add_u32 v19, s56, v18")
    e("s_waitcnt lgkmcnt(0)")
    for n in range(8):
        e(f"v_mfma_f32_16x16x32_bf16 v[{192+4*n}:{195+4*n}], v[{64+8*n}:{67+8*n}], v[224:227], 0")
    e("v_or3_b32 v240, v240, v241, v242"); e("v_or3_b32 v244, v244, v245, v246"); e("v_or3_b32 v240, v240, v243, v247"); e("v_or_b32 v240, v240, v244")
    for n in range(8):
        e(f"v_mfma_f32_16x16x32_bf16 v[{192+4*n}:{195+4*n}], v[{68+8*n}:{71+8*n}], v[228:231], v[{192+4*n}:{195+4*n}]")
    e("v_readfirstlane_b32 s62, v240")
    for n in range(8):
        e(f"v_mov_b32_dpp v{232+n}, v{192+4*n} quad_perm:[0,0,0,0] row_mask:0xf bank_mask:0xf")
    for r in (1,2,3):
        for n in range(8):
            e(f"v_add_f32_dpp v{232+n}, v{192+4*n+r}, v{232+n} quad_perm:[{r},{r},{r},{r}] row_mask:0xf bank_mask:0xf")
    e("v_max3_f32 v240, v232, v233, v234"); e("v_max3_f32 v241, v235, v236, v237"); e("v_max3_f32 v240, v240, v238, v239"); e("v_max_f32 v240, v240, v241")
    e("v_mov_b32 v241, v240"); e("v_permlane16_swap_b32 v241, v240"); e("v_max_f32 v240, v240, v241")
    e("v_mov_b32 v241, v240"); e("v_permlane32_swap_b32 v241, v240"); e("v_max_f32 v240, v240, v241")
    e("s_mov_b32 exec_lo, 0x11"); e("s_mov_b32 exec_hi, 0")
    e(f"ds_write_b32 v19, v240 offset:{L_MX}")
    e("s_mov_b64 exec, -1")
    e("s_waitcnt lgkmcnt(0)")
    e("s_barrier")
    e(f"ds_read_b128 v[192:195], v18 offset:{L_MX}")
    e(f"ds_read_b128 v[196:199], v18 offset:{L_MX+16}")
    e("s_waitcnt lgkmcnt(0)")
    e("v_max3_f32 v240, v192, v193, v194"); e("v_max3_f32 v241, v195, v196, v197"); e("v_max3_f32 v240, v240, v198, v199"); e("v_max_f32 v240, v240, v241")
    e("v_mul_f32 v240, s58, v240")
    for n in range(8): e(f"v_fma_f32 v{232+n}, v{232+n}, s58, -v240")
    for n in range(8): e(f"v_exp_f32 v{232+n}, v{232+n}")
    for u in range(4): e(f"v_cvt_pk_bf16_f32 v{244+u}, v{232+2*u}, v{233+2*u}")
    for u in range(4): e(f"v_mov_b32 v{248+u}, 0x3f803f80")
    for t in range(8):
        for u in range(4):
            e(f"v_cndmask_b32 v{64+4*t+u}, 0, v{244+u}, s[{64+2*t}:{65+2*t}]")
    e("v_mfma_f32_16x16x32_bf16 v[120:123], v[248:251], v[244:247], 0")
    ST("soft")
    for ee in range(8): vload(1,ee)
    e("v_lshrrev_b32 v20, 5, v1")
    e("v_mul_u32_u24 v20, 7168, v20")
    e("v_and_b32 v8, 31, v1")
    e("v_lshl_add_u32 v20, v8, 2, v20")
    e("s_lshl_b32 s56, s48, 9"); e("s_lshl_b32 s57, s49, 4"); e("s_add_u32 s56, s56, s57"); e("s_mul_i32 s56, s56, 896")
    e("s_lshl_b32 s57, s3, 7"); e("s_add_u32 s56, s56, s57")
    e("v_add_u32 v20, s56, v20")
    for r8 in range(8):
        of=r8*896
        if of<4096: e(f"buffer_load_dword v{192+r8}, v20, s[36:39], 0 offen offset:{of}{nt}")
        else:
            if r8==5: e("v_add_u32 v20, 4096, v20")
            e(f"buffer_load_dword v{192+r8}, v20, s[36:39], 0 offen offset:{of-4096}{nt}")
    e("s_mov_b32 exec_lo, 0x11"); e("s_mov_b32 exec_hi, 0")
    e(f"ds_write_b32 v19, v120 offset:{L_LS}")
    e("s_mov_b64 exec, -1")
    ST("V1iss")
    def pv(hh):
        acc=112+4*hh
        base=128+32*hh
        first=True
        for c in range(4):
            tb=96+8*(c%2)
            for u in range(4):
                e(f"v_perm_b32 v{tb+u}, v{base+4*(2*u+1)+c}, v{base+4*(2*u)+c}, s59")
            for u in range(4):
                e(f"v_perm_b32 v{tb+4+u}, v{base+4*(2*u+1)+c}, v{base+4*(2*u)+c}, s60")
            for par in range(2):
                t=2*c+par
                C="0" if first else f"v[{acc}:{acc+3}]"
                e(f"v_mfma_f32_16x16x32_bf16 v[{acc}:{acc+3}], v[{tb+4*par}:{tb+4*par+3}], v[{64+4*t}:{67+4*t}], {C}")
                first=False
    e("s_waitcnt vmcnt(16)")
    pv(0)
    e("s_lshl_b32 s56, s3, 11")
    e("v_lshlrev_b32 v21, 2, v1")
    e("v_add_u32 v22, s56, v21")
    for r in range(4): e(f"ds_write_b32 v22, v{112+r} offset:{L_OR+r*256}")
    e("v_lshlrev_b32 v23, 16, v16")
    e("v_lshl_add_u32 v23, v7, 13, v23")
    e("v_bfe_u32 v8, v1, 3, 1"); e("v_lshl_add_u32 v23, v8, 5, v23")
    e("v_lshl_add_u32 v23, v10, 3, v23")
    e("s_lshl_b32 s56, s48, 17"); e("s_lshl_b32 s57, s49, 7"); e("s_add_u32 s56, s56, s57"); e(f"s_add_u32 s56, s56, {WS_OB}")
    e("s_lshr_b32 s57, s3, 2"); e("s_lshl_b32 s57, s57, 15"); e("s_add_u32 s56, s56, s57")
    e("s_bfe_u32 s57, s3, 0x10001"); e("s_lshl_b32 s57, s57, 12"); e("s_add_u32 s56, s56, s57")
    e("s_and_b32 s57, s3, 1"); e("s_lshl_b32 s57, s57, 6"); e("s_add_u32 s56, s56, s57")
    e("s_lshl_b32 s57, s3, 8")
    e("v_add_u32 v24, s57, v21")
    e("v_mov_b32 v253, s51")
    e("s_waitcnt vmcnt(8)")
    ST("V1done")
    pv(1)
    for r in range(4): e(f"ds_write_b32 v22, v{116+r} offset:{L_OR+1024+r*256}")
    e("s_waitcnt lgkmcnt(0)")
    e("s_barrier")
    for k in range(8): e(f"ds_read_b32 v{96+k}, v24 offset:{L_OR+2048*k}")
    e("s_cmp_lg_u32 s3, 1"); e("s_cbranch_scc1 L_noml")
    e(f"ds_read_b128 v[108:111], v18 offset:{L_LS}")
    e(f"ds_read_b128 v[124:127], v18 offset:{L_LS+16}")
    e("L_noml:")
    e("s_waitcnt lgkmcnt(0)")
    e("v_add_f32 v96, v96, v97"); e("v_add_f32 v98, v98, v99"); e("v_add_f32 v100, v100, v101"); e("v_add_f32 v102, v102, v103")
    e("v_add_f32 v96, v96, v98"); e("v_add_f32 v100, v100, v102"); e("v_add_f32 v252, v96, v100")
    e("s_cmp_lg_u32 s62, 0"); e("s_cbranch_scc1 L_pubslow")
    e("buffer_store_dwordx2 v[252:253], v23, s[40:43], s56 offen")
    e("s_branch L_pubdone")
    e("L_pubslow:")
    e("buffer_store_dwordx2 v[252:253], v23, s[40:43], s56 offen sc1")
    e("L_pubdone:")
    e("s_cmp_lg_u32 s3, 1"); e("s_cbranch_scc1 L_noml2")
    e("v_add_f32 v108, v108, v109"); e("v_add_f32 v110, v110, v111"); e("v_add_f32 v124, v124, v125"); e("v_add_f32 v126, v126, v127")
    e("v_add_f32 v108, v108, v110"); e("v_add_f32 v124, v124, v126"); e("v_add_f32 v126, v108, v124")
    e("v_mov_b32 v124, v240"); e("v_mov_b32 v125, s51"); e("v_mov_b32 v127, s51")
    e("v_lshlrev_b32 v8, 9, v16")
    e("s_lshl_b32 s57, s48, 10"); e("s_lshl_b32 s63, s49, 4"); e("s_add_u32 s57, s57, s63"); e(f"s_add_u32 s57, s57, {WS_ML}")
    e("s_mov_b32 exec_lo, 0x11"); e("s_mov_b32 exec_hi, 0")
    e("s_cmp_lg_u32 s62, 0"); e("s_cbranch_scc1 L_mlslow")
    e("buffer_store_dwordx4 v[124:127], v8, s[40:43], s57 offen")
    e("s_branch L_mldone")
    e("L_mlslow:")
    e("buffer_store_dwordx4 v[124:127], v8, s[40:43], s57 offen sc1")
    e("L_mldone:")
    e("s_mov_b64 exec, -1")
    e("L_noml2:")
    ST("pub")
    e("s_cmp_lg_u32 s3, 0"); e("s_cbranch_scc1 L_nob")
    e("v_bfe_u32 v8, v1, 1, 4"); e("v_lshlrev_b32 v25, 7, v8")
    e("v_lshrrev_b32 v9, 5, v1"); e("v_lshl_add_u32 v25, v9, 6, v25")
    e("v_and_b32 v9, 1, v1"); e("v_lshl_add_u32 v25, v9, 5, v25")
    e("v_lshlrev_b32 v26, 4, v8")
    e("s_lshl_b32 s56, s48, 17"); e("s_lshl_b32 s57, s49, 12"); e("s_add_u32 s56, s56, s57"); e(f"s_add_u32 s56, s56, {WS_OB}")
    e("s_lshl_b32 s57, s48, 1"); e("s_lshr_b32 s63, s49, 4"); e("s_add_u32 s57, s57, s63"); e("s_lshl_b32 s57, s57, 9"); e(f"s_add_u32 s57, s57, {WS_ML}")
    e(f"s_mov_b32 s61, {spin_limit}")
    ST("Bstart")
    e("s_mov_b32 s63, 0")
    e("L_bpoll:")
    e("s_add_u32 s63, s63, 1")
    e("buffer_load_dwordx4 v[128:131], v25, s[40:43], s56 offen sc1")
    e("buffer_load_dwordx4 v[132:135], v25, s[40:43], s56 offen offset:16 sc1")
    e("buffer_load_dwordx4 v[136:139], v25, s[40:43], s56 offen offset:2048 sc1")
    e("buffer_load_dwordx4 v[140:143], v25, s[40:43], s56 offen offset:2064 sc1")
    e("buffer_load_dwordx4 v[144:147], v26, s[40:43], s57 offen sc1")
    e("buffer_load_dwordx4 v[148:151], v26, s[40:43], s57 offen offset:256 sc1")
    e("s_waitcnt vmcnt(0)")
    if stamp and "Bfirst" in stamp:
        e("s_cmp_lg_u32 s63, 1"); e("s_cbranch_scc1 L_nf"); ST("Bfirst"); e("L_nf:")
    e("v_min3_u32 v152, v129, v131, v133"); e("v_max3_u32 v153, v129, v131, v133")
    for a,b in ((135,137),(139,141),(143,145),(147,149)):
        e(f"v_min3_u32 v152, v152, v{a}, v{b}"); e(f"v_max3_u32 v153, v153, v{a}, v{b}")
    e("v_min_u32 v152, v152, v151"); e("v_max_u32 v153, v153, v151")
    e("v_xor_b32 v152, s51, v152"); e("v_xor_b32 v153, s51, v153"); e("v_or_b32 v152, v152, v153")
    e("v_cmp_ne_u32 vcc, 0, v152")
    e("s_cbranch_vccz L_bok")
    e("s_sub_u32 s61, s61, 1"); e("s_cmp_lg_u32 s61, 0"); e("s_cbranch_scc1 L_bpoll")
    e("L_bok:")
    ST("Bok")
    def allred(op,reg,tmp):
        for s_ in (2,4,8):
            e(f"{op}_dpp v{reg}, v{reg}, v{reg} row_ror:{s_} row_mask:0xf bank_mask:0xf")
        e(f"v_mov_b32 v{tmp}, v{reg}"); e(f"v_permlane16_swap_b32 v{tmp}, v{reg}"); e(f"{op} v{reg}, v{reg}, v{tmp}")
    e("v_max_f32 v152, v144, v148")
    allred("v_max_f32",152,153)
    e("v_sub_f32 v144, v144, v152"); e("v_sub_f32 v148, v148, v152")
    e("v_exp_f32 v144, v144"); e("v_exp_f32 v148, v148")
    e("v_mul_f32 v154, v144, v146"); e("v_fmac_f32 v154, v148, v150")
    for k in range(4): e(f"v_mul_f32 v{156+k}, v144, v{128+2*k}")
    for k in range(4): e(f"v_fmac_f32 v{156+k}, v148, v{136+2*k}")
    vals=[154,156,157,158,159]
    for s_ in (2,4,8):
        for r in vals: e(f"v_add_f32_dpp v{r}, v{r}, v{r} row_ror:{s_} row_mask:0xf bank_mask:0xf")
    for i,r in enumerate(vals): e(f"v_mov_b32 v{160+i}, v{r}")
    for i,r in enumerate(vals): e(f"v_permlane16_swap_b32 v{160+i}, v{r}")
    for i,r in enumerate(vals): e(f"v_add_f32 v{r}, v{r}, v{160+i}")
    e("v_rcp_f32 v154, v154")
    for k in range(4): e(f"v_mul_f32 v{156+k}, v{156+k}, v154")
    e("v_cvt_pk_bf16_f32 v160, v156, v157"); e("v_cvt_pk_bf16_f32 v161, v158, v159")
    e("v_lshlrev_b32 v156, 16, v160"); e("v_and_b32 v157, 0xffff0000, v160")
    e("v_lshlrev_b32 v158, 16, v161"); e("v_and_b32 v159, 0xffff0000, v161")
    e("v_lshrrev_b32 v8, 5, v1"); e("v_lshlrev_b32 v8, 5, v8"); e("v_lshl_add_u32 v8, v9, 4, v8")
    e("s_mov_b32 exec_lo, 3"); e("s_mov_b32 exec_hi, 3")
    e(f"ds_write_b128 v8, v[156:159] offset:{L_OV}")
    e("s_mov_b64 exec, -1")
    e("L_nob:")
    e("s_waitcnt vmcnt(0)")
    for r8 in range(8):
        e(f"v_lshlrev_b32 v{200+2*r8}, 16, v{192+r8}"); e(f"v_and_b32 v{201+2*r8}, 0xffff0000, v{192+r8}")
    e("v_lshrrev_b32 v8, 5, v1"); e("v_lshlrev_b32 v8, 5, v8")
    e("v_lshrrev_b32 v27, 2, v1"); e("v_lshlrev_b32 v27, 14, v27")
    e("v_lshl_add_u32 v27, v10, 4, v27")
    e("s_lshl_b32 s56, s3, 17"); e("s_lshl_b32 s57, s48, 11"); e("s_add_u32 s56, s56, s57"); e("s_lshl_b32 s57, s49, 6"); e("s_add_u32 s56, s56, s57"); e(f"s_add_u32 s56, s56, {WS_OC}")
    e("v_mov_b32 v105, s51"); e("v_mov_b32 v107, s51")
    e("s_waitcnt lgkmcnt(0)")
    e("s_barrier")
    ST("B5")
    e("s_cmp_eq_u32 s3, 7"); e("s_cbranch_scc1 L_stageC")
    e(f"ds_read_b128 v[96:99], v8 offset:{L_OV}")
    e(f"ds_read_b128 v[100:103], v8 offset:{L_OV+16}")
    e("s_waitcnt lgkmcnt(0)")
    e("v_mul_f32 v104, v96, v200"); e("v_mul_f32 v106, v96, v201")
    for r8 in range(1,8):
        e(f"v_fmac_f32 v104, v{96+r8}, v{200+2*r8}"); e(f"v_fmac_f32 v106, v{96+r8}, v{201+2*r8}")
    e("v_mov_b32 v108, v104"); e("v_mov_b32 v109, v106")
    e("v_permlane32_swap_b32 v108, v104"); e("v_permlane32_swap_b32 v109, v106")
    e("v_add_f32 v104, v104, v108"); e("v_add_f32 v106, v106, v109")
    e("s_mov_b32 exec_hi, 0")
    e("buffer_store_dwordx4 v[104:107], v27, s[40:43], s56 offen sc1")
    e("s_mov_b64 exec, -1")
    ST("Cpub")
    e("L_stageC:")
    e(f"s_cmp_ge_u32 s2, {NRED}"); e("s_cbranch_scc1 L_end")
    e("s_lshl_b32 s56, s2, 14"); e("s_lshl_b32 s57, s3, 11"); e("s_add_u32 s56, s56, s57"); e(f"s_add_u32 s56, s56, {WS_OC}")
    e("v_lshlrev_b32 v14, 4, v1")
    e(f"s_mov_b32 s61, {spin_limit}")
    e("L_cpoll:")
    e("buffer_load_dwordx4 v[128:131], v14, s[40:43], s56 offen sc1")
    e("buffer_load_dwordx4 v[132:135], v14, s[40:43], s56 offen offset:1024 sc1")
    e("s_waitcnt vmcnt(0)")
    e("v_min3_u32 v96, v129, v131, v133"); e("v_max3_u32 v97, v129, v131, v133")
    e("v_min_u32 v96, v96, v135"); e("v_max_u32 v97, v97, v135")
    e("v_xor_b32 v96, s51, v96"); e("v_xor_b32 v97, s51, v97"); e("v_or_b32 v96, v96, v97")
    e("v_cmp_ne_u32 vcc, 0, v96")
    e("s_cbranch_vccz L_cok")
    e("s_sub_u32 s61, s61, 1"); e("s_cmp_lg_u32 s61, 0"); e("s_cbranch_scc1 L_cpoll")
    e("L_cok:")
    ST("Cok")
    e("v_add_f32 v128, v128, v132"); e("v_add_f32 v130, v130, v134")
    for s_ in (4,8):
        e(f"v_add_f32_dpp v128, v128, v128 row_ror:{s_} row_mask:0xf bank_mask:0xf")
        e(f"v_add_f32_dpp v130, v130, v130 row_ror:{s_} row_mask:0xf bank_mask:0xf")
    for sw in ("16","32"):
        e("v_mov_b32 v96, v128"); e("v_mov_b32 v97, v130")
        e(f"v_permlane{sw}_swap_b32 v96, v128"); e(f"v_permlane{sw}_swap_b32 v97, v130")
        e("v_add_f32 v128, v128, v96"); e("v_add_f32 v130, v130, v97")
    e("v_mov_b32 v129, v130")
    e("s_lshl_b32 s57, s3, 5"); e("v_lshlrev_b32 v99, 3, v1"); e("v_add_u32 v98, s57, v99")
    e("s_mov_b32 exec_lo, 0xf"); e("s_mov_b32 exec_hi, 0")
    e(f"ds_write_b64 v98, v[128:129] offset:{L_RC}")
    e("s_mov_b64 exec, -1")
    e("s_waitcnt lgkmcnt(0)")
    e("s_barrier")
    e("s_cmp_lg_u32 s3, 0"); e("s_cbranch_scc1 L_end")
    e("s_mov_b32 exec_lo, 0xf"); e("s_mov_b32 exec_hi, 0")
    for k in range(8): e(f"ds_read_b64 v[{128+2*k}:{129+2*k}], v99 offset:{L_RC+32*k}")
    e("s_lshl_b32 s57, s2, 4")
    e("v_lshlrev_b32 v99, 2, v1")
    e("s_waitcnt lgkmcnt(0)")
    for stp in (2,4,8):
        for k in range(0,16,2*stp):
            e(f"v_add_f32 v{128+k}, v{128+k}, v{128+k+stp}"); e(f"v_add_f32 v{129+k}, v{129+k}, v{129+k+stp}")
    e("v_cvt_pk_bf16_f32 v98, v128, v129")
    e("buffer_store_dword v98, v99, s[44:47], s57 offen")
    e("s_cmp_lg_u32 s2, 0"); e("s_cbranch_scc1 L_end")
    e("s_mov_b32 exec_lo, 1")
    e("v_mov_b32 v100, s50"); e("v_mov_b32 v101, 0")
    e("buffer_store_dword v100, v101, s[40:43], 0 offen sc1")
    e("L_end:")
    if stamp:
        ST("end")
        n=nst[0]
        e("s_mov_b64 exec, -1")
        e("s_waitcnt lgkmcnt(0)")
        e("s_lshl_b32 s56, s2, 3"); e("s_add_u32 s56, s56, s3"); e("s_lshl_b32 s56, s56, 6"); e(f"s_add_u32 s56, s56, {WS_STAMP}")
        for i in range(16):
            e(f"v_mov_b32 v{96+i}, s{SREG(i)}" if i<n else (f"v_mov_b32 v{96+i}, s63" if i==15 else f"v_mov_b32 v{96+i}, 0"))
        e("v_mov_b32 v112, 0")
        e("s_mov_b32 exec_lo, 1"); e("s_mov_b32 exec_hi, 0")
        if dbg:
            e("s_mov_b32 s20, s100"); e("s_mov_b32 s21, s101"); e("s_mov_b32 s22, 256"); e("s_mov_b32 s23, 0x20000")
            e("v_not_b32 v113, v96")
            e("buffer_atomic_umax v113, v112, s[20:23], 0 offen offset:60")
            for i in range(n):
                nm=names[i]
                lab=f"L_dbg{i}"
                if nm in("Bfirst","Bok"): e("s_cmp_lg_u32 s3, 0"); e(f"s_cbranch_scc1 {lab}")
                if nm=="Cpub": e("s_cmp_eq_u32 s3, 7"); e(f"s_cbranch_scc1 {lab}")
                if nm=="Cok": e(f"s_cmp_ge_u32 s2, {NRED}"); e(f"s_cbranch_scc1 {lab}")
                e(f"buffer_atomic_umax v{96+i}, v112, s[20:23], 0 offen offset:{4*i}")
                e(f"{lab}:")
        for q in range(4):
            e(f"buffer_store_dwordx4 v[{96+4*q}:{99+4*q}], v112, s[40:43], s56 offen offset:{16*q}")
    e("L_done:"); e("s_endpgm")
    e('.section .rodata,"a"'); e(".p2align 6"); e(f".amdhsa_kernel {NAME}")
    e("  .amdhsa_next_free_vgpr 256"); e(f"  .amdhsa_next_free_sgpr {102 if stamp else 96}"); e("  .amdhsa_accum_offset 256")
    e("  .amdhsa_group_segment_fixed_size 0"); e("  .amdhsa_kernarg_size 64"); e("  .amdhsa_user_sgpr_count 2")
    e("  .amdhsa_user_sgpr_kernarg_segment_ptr 1"); e("  .amdhsa_system_sgpr_workgroup_id_x 1"); e(".end_amdhsa_kernel")
    if stamp: open("stampnames.txt","w").write(",".join(names))
    return "\n".join(pad(o,verbose=True))+"\n"

STAMPS=["entry","setup","qpub","Kiss","Kdone","B2","soft","V1done","pub","Bfirst","Bok","B5","Cpub","Cok","end"]
if __name__=="__main__":
    from build import build
    open("k2.s","w").write(gen()); build("k2.s","k2.co")
    open("k2slow.s","w").write(gen(force_slow=True)); build("k2slow.s","k2slow.co")
    open("k2s.s","w").write(gen(stamp=STAMPS)); build("k2s.s","k2s.co")
    open("k2d.s","w").write(gen(stamp=STAMPS,dbg=True)); build("k2d.s","k2d.co")
```

```python
import sys, struct
from asmlib import pad

NAME="standalone__gqa_block_cached__decode_kernel"
def f32hex(x): return "0x%08x"%struct.unpack("<I",struct.pack("<f",x))[0]

WS_EPOCH=0
WS_ML=0x6000
WS_QA=0x40000
WS_QS=0x60000
WS_OB=0x100000
WS_OC=0x200000
WS_STAMP=0x400000
WS_SIZE=0x800000
NRED=56
L_QP=19456+14336
L_CNT=1024
L_QPUB=1028
L_QRDY=1032
L_FL=1040
L_MX=1088
L_LS=1152
L_OV=1216
L_RC=1280
L_P=2048
L_OR=10240
L_QB=18432
L_WO=19456
L_TOTAL=19456+14336+4096

def SREG(i): return 80+2*i if i<10 else 4+2*(i-10)
T0,T1="s0","s1"
SPIN="s100"; CC="s101"

def gen(stamp=None, nt=" nt", spin_limit=200000, force_slow=False, pretouch=True, k1=10, wqnt=None):
    if wqnt is None: wqnt=nt
    o=[]; e=o.append
    nst=[0]; names=[]
    def ST(name):
        if stamp and (name in stamp):
            if name in names: i=names.index(name)
            else:
                i=nst[0]; nst[0]+=1; names.append(name)
            r=SREG(i); e(f"s_memrealtime s[{r}:{r+1}]")
    hdr=open("standalone__gqa_block_cached__decode.s.ref").read().split("\n")
    for l in hdr:
        if l.startswith("; Kernarg") or l.startswith(";   offset"): e(l)
    e(f"; @launch grid=(256,1,1) block=(512,1,1) lds={L_TOTAL}")
    e('.amdgcn_target "amdgcn-amd-amdhsa--gfx950"')
    e(".text"); e(f".globl {NAME}"); e(".p2align 8"); e(f".type {NAME},@function"); e(f"{NAME}:")
    ST("entry")
    e("s_cmp_ge_u32 s2, 256"); e("s_cbranch_scc1 L_done")
    e("s_load_dwordx16 s[4:19], s[0:1], 0")
    e("v_and_b32 v1, 63, v0")
    e("v_lshrrev_b32 v2, 6, v0")
    e("s_and_b32 s48, s2, 7")
    e("s_lshr_b32 s49, s2, 3")
    e("v_readfirstlane_b32 s3, v2")
    e("s_getreg_b32 s62, hwreg(HW_REG_XCC_ID)")
    e("s_and_b32 s62, s62, 7")
    e("v_lshrrev_b32 v7, 4, v1")
    e("v_and_b32 v10, 3, v1")
    e("v_bfe_u32 v16, v1, 2, 1")
    e("s_lshl_b32 s52, s48, 22"); e(f"s_lshl_b32 {T0}, s49, 17"); e(f"s_add_u32 s52, s52, {T0}")
    e(f"s_and_b32 {T0}, s3, 3"); e(f"s_lshl_b32 {T0}, {T0}, 15"); e(f"s_add_u32 s52, s52, {T0}")
    for i in range(1,8): e(f"s_add_u32 s{52+i}, s52, {4096*i}")
    def srd(d,lo,size):
        e(f"s_mov_b32 s{d}, s{lo}"); e(f"s_mov_b32 s{d+1}, s{lo+1}"); e(f"s_mov_b32 s{d+2}, {size}"); e(f"s_mov_b32 s{d+3}, 0x20000")
    def common_consts():
        srd(36,12,3670016); srd(40,18,WS_SIZE); srd(44,14,896)
        e(f"s_mov_b32 {CC}, {f32hex(1.4426950408889634/16)}")
    e("s_cmp_lt_u32 s3, 4"); e("s_cbranch_scc1 L_vwave")
    e("v_lshlrev_b32 v2, 6, v7")
    e("v_bfe_u32 v8, v1, 2, 2")
    e("v_lshl_add_u32 v2, v8, 9, v2")
    e("v_lshl_add_u32 v2, v10, 4, v2")
    e("v_lshlrev_b32 v14, 4, v1")
    e(f"v_mov_b32 v22, {L_CNT}")
    e("s_waitcnt lgkmcnt(0)")
    srd(20,6,0x2000000)
    e("s_barrier")
    def kload(n):
        of=(n//2)*2048+(n%2)*256
        e(f"buffer_load_dwordx4 v[{64+4*n}:{67+4*n}], v2, s[20:23], s{52+of//4096} offen offset:{of%4096}{nt}")
    for n in range(k1): kload(n)
    e("s_load_dword s50, s[18:19], 0")
    common_consts()
    e(f"s_mov_b32 {SPIN}, {spin_limit}")
    e("L_wpub:")
    e("ds_read_b32 v21, v22 offset:4")
    e("s_waitcnt lgkmcnt(0)")
    e("v_readfirstlane_b32 s0, v21")
    e(f"s_sub_u32 {SPIN}, {SPIN}, 1"); e(f"s_cmp_eq_u32 {SPIN}, 0"); e("s_cbranch_scc1 L_wpubok")
    e("s_cmp_eq_u32 s0, 0"); e("s_cbranch_scc1 L_wpub")
    e("L_wpubok:")
    for n in range(k1,32): kload(n)
    e("s_add_u32 s50, s50, 1"); e("s_lshl_b32 s51, s50, 3"); e("s_or_b32 s63, s51, s62")
    e(f"s_lshl_b32 {T0}, s48, 14"); e(f"s_and_b32 {T1}, s3, 3"); e(f"s_lshl_b32 {T1}, {T1}, 10"); e(f"s_add_u32 {T0}, {T0}, {T1}"); e(f"s_add_u32 {T0}, {T0}, {WS_QA}")
    e("v_add_u32 v15, 4096, v14"); e("v_add_u32 v17, 0x2000, v14"); e("v_add_u32 v18, 0x3000, v14")
    def gload():
        for p_,va in enumerate(("v14","v15","v17","v18")):
            e(f"buffer_load_dwordx4 v[{192+4*p_}:{195+4*p_}], {va}, s[40:43], {T0} offen sc1")
    gload()
    ST("Kiss")
    e("s_barrier")
    e(f"s_mov_b32 {SPIN}, {spin_limit}")
    e("s_waitcnt vmcnt(0)")
    ST("Kdone")
    e("L_qchk:")
    for i in range(8): e(f"v_xor_b32 v{208+i}, s63, v{193+2*i}")
    e("v_or3_b32 v208, v208, v209, v210"); e("v_or3_b32 v211, v211, v212, v213"); e("v_or3_b32 v208, v208, v214, v215"); e("v_or_b32 v208, v208, v211")
    e("v_cmp_le_u32 vcc, 8, v208")
    e("s_cbranch_vccz L_qok")
    e(f"s_sub_u32 {SPIN}, {SPIN}, 1"); e(f"s_cmp_eq_u32 {SPIN}, 0"); e("s_cbranch_scc1 L_qok")
    e(f"s_xor_b32 {T0}, {T0}, {WS_QA^WS_QS}")
    e("s_setprio 3")
    gload()
    e("s_setprio 0")
    e("s_waitcnt vmcnt(0)")
    e("s_branch L_qchk")
    e("L_qok:")
    if stamp: e(f"s_sub_u32 s63, {spin_limit}, {SPIN}")
    e("v_cmp_ne_u32 vcc, 0, v208")
    e("v_add_f32 v192, v192, v196"); e("v_add_f32 v194, v194, v198"); e("v_add_f32 v200, v200, v204"); e("v_add_f32 v202, v202, v206")
    e("v_add_f32 v192, v192, v200"); e("v_add_f32 v194, v194, v202")
    e("s_cmp_lg_u64 vcc, 0"); e("s_cselect_b32 s1, 0x101, 1")
    if force_slow: e("s_mov_b32 s1, 0x101")
    e("v_cvt_pk_bf16_f32 v192, v192, v194")
    e(f"s_and_b32 s0, s3, 3"); e("s_lshl_b32 s0, s0, 8")
    e("v_lshlrev_b32 v15, 2, v1"); e("v_add_u32 v15, s0, v15")
    e(f"ds_write_b32 v15, v192 offset:{L_QB}")
    e("v_mov_b32 v21, s1")
    e("s_waitcnt lgkmcnt(0)")
    e("s_mov_b32 exec_lo, 1"); e("s_mov_b32 exec_hi, 0")
    e("ds_add_u32 v22, v21 offset:8")
    e("s_mov_b64 exec, -1")
    e("L_qwait:")
    e("ds_read_b32 v21, v22 offset:8")
    e("s_waitcnt lgkmcnt(0)")
    e("v_readfirstlane_b32 s62, v21")
    e(f"s_sub_u32 {SPIN}, {SPIN}, 1"); e(f"s_cmp_eq_u32 {SPIN}, 0"); e("s_cbranch_scc1 L_qrdy")
    e("s_and_b32 s0, s62, 0xff"); e("s_cmp_lt_u32 s0, 4"); e("s_cbranch_scc1 L_qwait")
    e("L_qrdy:")
    e("s_lshr_b32 s62, s62, 8")
    e("v_lshlrev_b32 v17, 9, v16"); e("v_lshl_add_u32 v17, v7, 6, v17"); e("v_lshl_add_u32 v17, v10, 4, v17")
    e(f"ds_read_b128 v[224:227], v17 offset:{L_QB}")
    e(f"ds_read_b128 v[228:231], v17 offset:{L_QB+256}")
    e("s_waitcnt vmcnt(0) lgkmcnt(0)")
    ST("qrdy")
    for bt in range(2):
        for n in range(8):
            t=8*bt+n
            e(f"v_mfma_f32_16x16x32_bf16 v[{192+4*n}:{195+4*n}], v[{64+8*t}:{67+8*t}], v[224:227], 0")
        for n in range(8):
            t=8*bt+n
            e(f"v_mfma_f32_16x16x32_bf16 v[{192+4*n}:{195+4*n}], v[{68+8*t}:{71+8*t}], v[228:231], v[{192+4*n}:{195+4*n}]")
        for n in range(8):
            e(f"v_mov_b32_dpp v{232+8*bt+n}, v{192+4*n} quad_perm:[0,0,0,0] row_mask:0xf bank_mask:0xf")
        for r in (1,2,3):
            for n in range(8):
                e(f"v_add_f32_dpp v{232+8*bt+n}, v{192+4*n+r}, v{232+8*bt+n} quad_perm:[{r},{r},{r},{r}] row_mask:0xf bank_mask:0xf")
    e("v_max3_f32 v248, v232, v233, v234")
    for k in range(235,247,2): e(f"v_max3_f32 v248, v248, v{k}, v{k+1}")
    e("v_max_f32 v248, v248, v247")
    e("v_mov_b32 v249, v248"); e("v_permlane16_swap_b32 v249, v248"); e("v_max_f32 v248, v248, v249")
    e("v_mov_b32 v249, v248"); e("v_permlane32_swap_b32 v249, v248"); e("v_max_f32 v248, v248, v249")
    e(f"v_mul_f32 v248, {CC}, v248")
    for n in range(16): e(f"v_fma_f32 v{232+n}, v{232+n}, {CC}, -v248")
    for n in range(16): e(f"v_exp_f32 v{232+n}, v{232+n}")
    for u in range(8): e(f"v_cvt_pk_bf16_f32 v{192+u}, v{232+2*u}, v{233+2*u}")
    for u in range(4): e(f"v_mov_b32 v{200+u}, 0x3f803f80")
    e("v_mfma_f32_16x16x32_bf16 v[204:207], v[200:203], v[192:195], 0")
    e("v_mfma_f32_16x16x32_bf16 v[204:207], v[200:203], v[196:199], v[204:207]")
    e(f"s_and_b32 {T0}, s3, 3"); e(f"s_lshl_b32 {T1}, {T0}, 11")
    e("v_lshlrev_b32 v20, 4, v1"); e(f"v_add_u32 v20, {T1}, v20")
    e(f"ds_write_b128 v20, v[192:195] offset:{L_P}")
    e(f"ds_write_b128 v20, v[196:199] offset:{L_P+1024}")
    e(f"s_lshl_b32 {T1}, {T0}, 2")
    e("v_lshlrev_b32 v18, 4, v16"); e(f"v_add_u32 v19, {T1}, v18")
    e("s_mov_b32 exec_lo, 0x11"); e("s_mov_b32 exec_hi, 0")
    e(f"ds_write_b32 v19, v248 offset:{L_MX}")
    e(f"ds_write_b32 v19, v204 offset:{L_LS}")
    e("s_mov_b64 exec, -1")
    ST("soft")
    e(f"s_lshl_b32 {T0}, s48, 9"); e(f"s_lshl_b32 {T1}, s49, 4"); e(f"s_add_u32 {T0}, {T0}, {T1}")
    e(f"s_and_b32 {T1}, s3, 3"); e(f"s_lshl_b32 {T1}, {T1}, 2"); e(f"s_add_u32 {T0}, {T0}, {T1}"); e(f"s_mul_i32 {T0}, {T0}, 896")
    e("v_lshlrev_b32 v20, 4, v1")
    e("s_mov_b32 exec_hi, 0x00ffffff")
    for n in range(4): e(f"buffer_load_dwordx4 v[{64+4*n}:{67+4*n}], v20, s[36:39], {T0} offen offset:{896*n}{nt}")
    e("s_mov_b64 exec, -1")
    if pretouch:
        e("s_cmp_lg_u32 s3, 6"); e("s_cbranch_scc1 L_nopre")
        e(f"s_lshl_b32 {T0}, s48, 17"); e(f"s_lshl_b32 {T1}, s49, 12"); e(f"s_add_u32 {T0}, {T0}, {T1}"); e(f"s_add_u32 {T0}, {T0}, {WS_OB}")
        e("v_lshlrev_b32 v8, 7, v1"); e(f"v_add_u32 v8, {T0}, v8")
        e(f"s_lshl_b32 {T1}, s48, 1"); e(f"s_lshr_b32 {T0}, s49, 4"); e(f"s_add_u32 {T1}, {T1}, {T0}"); e(f"s_lshl_b32 {T1}, {T1}, 9"); e(f"s_add_u32 {T1}, {T1}, {WS_ML-4096}")
        e("v_lshlrev_b32 v9, 7, v1"); e(f"v_add_u32 v9, {T1}, v9")
        e("v_cmp_gt_u32 vcc, 32, v1"); e("v_cndmask_b32 v8, v9, v8, vcc")
        e("s_mov_b32 exec_hi, 0xf")
        e("buffer_load_dword v52, v8, s[40:43], 0 offen sc1")
        e("s_mov_b64 exec, -1")
        e("L_nopre:")
    e("s_branch L_join")
    e("L_vwave:")
    e(f"s_lshr_b32 {T0}, s49, 3"); e(f"s_mul_i32 {T0}, {T0}, 112"); e(f"s_mul_i32 {T1}, s3, 28"); e(f"s_add_u32 {T0}, {T0}, {T1}")
    e(f"s_lshl_b32 {T1}, {T0}, 1"); e("v_lshlrev_b32 v6, 2, v1"); e(f"v_add_u32 v6, {T1}, v6")
    e("v_mov_b32 v9, 0x10000000"); e("v_cmp_gt_u32 vcc, 14, v1"); e("v_cndmask_b32 v6, v9, v6, vcc")
    e("v_lshrrev_b32 v8, 3, v1")
    e(f"v_add_u32 v4, {T0}, v8")
    e(f"s_lshl_b32 {T0}, s48, 10"); e(f"s_and_b32 {T1}, s49, 7"); e(f"s_lshl_b32 {T1}, {T1}, 7"); e(f"s_add_u32 {T0}, {T0}, {T1}")
    e("v_and_b32 v11, 7, v1"); e("v_lshlrev_b32 v12, 4, v11")
    e("v_lshl_add_u32 v4, v4, 13, v12"); e(f"v_add_u32 v4, {T0}, v4")
    e("v_add_u32 v13, 0x30000, v4"); e("v_cmp_gt_u32 vcc, 32, v1"); e("v_cndmask_b32 v13, v9, v13, vcc")
    e("v_mov_b32 v24, 0"); e("v_mov_b32 v25, 0"); e("v_mov_b32 v26, 0"); e("v_mov_b32 v27, 0"); e(f"v_mov_b32 v22, {L_CNT}")
    e("s_waitcnt lgkmcnt(0)")
    srd(32,4,896); srd(28,10,3670016)
    e("buffer_load_dword v128, v6, s[32:35], 0 offen")
    e(f"buffer_load_dwordx4 v[132:135], v4, s[28:31], 0 offen{wqnt}")
    e("v_add_u32 v5, 0x10000, v4")
    e(f"buffer_load_dwordx4 v[136:139], v5, s[28:31], 0 offen{wqnt}")
    e("v_add_u32 v5, 0x20000, v4")
    e(f"buffer_load_dwordx4 v[140:143], v5, s[28:31], 0 offen{wqnt}")
    e(f"buffer_load_dwordx4 v[144:147], v13, s[28:31], 0 offen{wqnt}")
    e("ds_write_b128 v22, v[24:27]")
    e("s_load_dword s50, s[18:19], 0")
    e("s_waitcnt lgkmcnt(0)")
    e("s_barrier")
    common_consts()
    srd(24,8,0x2000000)
    e("s_add_u32 s50, s50, 1"); e("s_lshl_b32 s51, s50, 3"); e("s_or_b32 s63, s51, s62")
    e("s_mov_b32 s60, 0x05040100"); e("s_mov_b32 s61, 0x07060302")
    for t in range(8):
        p=((1<<t)|(1<<(4+t))) if t<4 else ((1<<(8+t-4))|(1<<(12+t-4)))
        p=p*0x00010001
        e(f"s_mov_b32 s{64+2*t}, {hex(p)}"); e(f"s_mov_b32 s{65+2*t}, {hex(p)}")
    e("v_and_b32 v9, 15, v1"); e("v_lshlrev_b32 v3, 9, v7"); e("v_lshl_add_u32 v3, v9, 4, v3")
    e("v_and_b32 v12, 1, v8"); e("v_lshlrev_b32 v12, 4, v12"); e("v_sub_u32 v12, 16, v12")
    e("v_lshlrev_b32 v8, 2, v7")
    e("v_lshlrev_b32 v11, 5, v11"); e("v_lshl_add_u32 v11, v7, 8, v11"); e(f"s_lshl_b32 {T0}, s3, 10"); e(f"v_add_u32 v11, {T0}, v11")
    e("s_waitcnt vmcnt(4)")
    for n in range(4):
        if n: e(f"v_add_u32 v9, {16*n}, v8")
        e(f"ds_bpermute_b32 v{148+n}, {'v9' if n else 'v8'}, v128")
    e("s_waitcnt lgkmcnt(0)")
    for n in range(4):
        e(f"v_lshlrev_b32 v{148+n}, v12, v{148+n}"); e(f"v_and_b32 v{148+n}, 0xffff0000, v{148+n}")
    e("s_waitcnt vmcnt(0)")
    for c in range(4):
        for n in range(4):
            e(f"v_lshlrev_b32 v160, 16, v{132+4*n+c}"); e(f"v_and_b32 v161, 0xffff0000, v{132+4*n+c}")
            if n==0:
                e(f"v_mul_f32 v{152+2*c}, v160, v148"); e(f"v_mul_f32 v{153+2*c}, v161, v148")
            else:
                e(f"v_fmac_f32 v{152+2*c}, v160, v{148+n}"); e(f"v_fmac_f32 v{153+2*c}, v161, v{148+n}")
    for k in range(8):
        e(f"v_add_f32_dpp v{152+k}, v{152+k}, v{152+k} row_ror:8 row_mask:0xf bank_mask:0xf")
    e("s_mov_b32 exec_lo, 0x00ff00ff"); e("s_mov_b32 exec_hi, 0x00ff00ff")
    e(f"ds_write_b128 v11, v[152:155] offset:{L_QP}")
    e(f"ds_write_b128 v11, v[156:159] offset:{L_QP+16}")
    e("s_mov_b32 exec_lo, 1"); e("s_mov_b32 exec_hi, 0")
    e("v_mov_b32 v21, 1")
    e("s_waitcnt lgkmcnt(0)")
    e("ds_add_u32 v22, v21")
    e("s_mov_b64 exec, -1")
    e("s_cmp_lg_u32 s3, 0"); e("s_cbranch_scc1 L_noq")
    e(f"s_mov_b32 {SPIN}, {spin_limit}")
    e("L_cnt:")
    e("ds_read_b32 v21, v22")
    e("s_waitcnt lgkmcnt(0)")
    e("v_readfirstlane_b32 s0, v21")
    e(f"s_sub_u32 {SPIN}, {SPIN}, 1"); e(f"s_cmp_eq_u32 {SPIN}, 0"); e("s_cbranch_scc1 L_cntok")
    e("s_cmp_lt_u32 s0, 4"); e("s_cbranch_scc1 L_cnt")
    e("L_cntok:")
    e("v_lshlrev_b32 v12, 2, v1")
    for k in range(16): e(f"ds_read_b32 v{144+k}, v12 offset:{L_QP+256*k}")
    e("v_lshlrev_b32 v13, 3, v1")
    e(f"s_lshl_b32 {T0}, s48, 14"); e(f"s_lshr_b32 {T1}, s49, 3"); e(f"s_lshl_b32 {T1}, {T1}, 12"); e(f"s_add_u32 {T0}, {T0}, {T1}")
    e(f"s_and_b32 {T1}, s49, 7"); e(f"s_lshl_b32 {T1}, {T1}, 9"); e(f"s_add_u32 {T0}, {T0}, {T1}")
    e(f"s_add_u32 {T1}, {T0}, {WS_QS}"); e(f"s_add_u32 {T0}, {T0}, {WS_QA}")
    e("s_waitcnt lgkmcnt(0)")
    for stp in (1,2,4,8):
        for k in range(0,16,2*stp): e(f"v_add_f32 v{144+k}, v{144+k}, v{144+k+stp}")
    e("v_mov_b32_dpp v146, v144 quad_perm:[1,0,3,2] row_mask:0xf bank_mask:0xf")
    e("v_mov_b32 v145, s63"); e("v_mov_b32 v147, s63")
    e("s_mov_b32 exec_lo, 0x55555555"); e("s_mov_b32 exec_hi, 0x55555555")
    if not force_slow: e(f"buffer_store_dwordx4 v[144:147], v13, s[40:43], {T0} offen")
    e(f"buffer_store_dwordx4 v[144:147], v13, s[40:43], {T1} offen sc1")
    e("s_mov_b32 exec_hi, 0")
    e("s_mov_b32 exec_lo, 1")
    e("v_mov_b32 v21, 1")
    e("ds_write_b32 v22, v21 offset:4")
    e("s_mov_b64 exec, -1")
    e("L_noq:")
    ST("qpub")
    e("s_barrier")
    def vload(s_,hh,ee):
        of=s_*16384+ee*2048+hh*256
        r=128+64*s_+32*hh+4*ee
        e(f"buffer_load_dwordx4 v[{r}:{r+3}], v3, s[24:27], s{52+of//4096} offen offset:{of%4096}{nt}")
    for s_ in range(2):
        for hh in range(2):
            for ee in range(8):
                of=s_*16384+ee*2048+hh*256
                r=64+64*s_+32*hh+4*ee
                e(f"buffer_load_dwordx4 v[{r}:{r+3}], v3, s[24:27], s{52+of//4096} offen offset:{of%4096}{nt}")
    ST("Viss")
    e("L_join:")
    npre=0
    e("s_waitcnt lgkmcnt(0)")
    e("s_barrier")
    ST("P")
    e("v_lshlrev_b32 v18, 4, v16")
    e(f"ds_read_b128 v[232:235], v18 offset:{L_MX}")
    e(f"ds_read_b128 v[236:239], v18 offset:{L_LS}")
    e("v_mov_b32 v8, 0"); e(f"ds_read_b32 v240, v8 offset:{L_QRDY}")
    e("s_cmp_ge_u32 s3, 4"); e("s_cbranch_scc1 L_nopv0")
    e(f"s_lshl_b32 {T1}, s3, 11"); e("v_lshlrev_b32 v20, 4, v1"); e(f"v_add_u32 v20, {T1}, v20")
    e(f"ds_read_b128 v[192:195], v20 offset:{L_P}")
    e(f"ds_read_b128 v[196:199], v20 offset:{L_P+1024}")
    e("L_nopv0:")
    e("s_waitcnt lgkmcnt(0)")
    e("v_readfirstlane_b32 s62, v240"); e("s_lshr_b32 s62, s62, 8")
    e("v_max3_f32 v241, v232, v233, v234"); e("v_max_f32 v241, v241, v235")
    for k in range(4): e(f"v_sub_f32 v{232+k}, v{232+k}, v241")
    for k in range(4): e(f"v_exp_f32 v{232+k}, v{232+k}")
    e("v_mul_f32 v242, v232, v236")
    for k in range(1,4): e(f"v_fmac_f32 v242, v{232+k}, v{236+k}")
    e("s_cmp_lg_u32 s3, 4"); e("s_cbranch_scc1 L_noml2")
    e("v_mov_b32 v192, v241"); e("v_mov_b32 v193, s51"); e("v_mov_b32 v194, v242"); e("v_mov_b32 v195, s51")
    e("v_lshlrev_b32 v8, 9, v16")
    e(f"s_lshl_b32 {T1}, s48, 10"); e(f"s_lshl_b32 {T0}, s49, 4"); e(f"s_add_u32 {T1}, {T1}, {T0}"); e(f"s_add_u32 {T1}, {T1}, {WS_ML}")
    e("s_mov_b32 exec_lo, 0x11"); e("s_mov_b32 exec_hi, 0")
    e("s_cmp_lg_u32 s62, 0"); e("s_cbranch_scc1 L_mlslow")
    e(f"buffer_store_dwordx4 v[192:195], v8, s[40:43], {T1} offen")
    e("s_branch L_mldone")
    e("L_mlslow:")
    e(f"buffer_store_dwordx4 v[192:195], v8, s[40:43], {T1} offen sc1")
    e("L_mldone:")
    e("s_mov_b64 exec, -1")
    e("L_noml2:")
    e("v_lshlrev_b32 v23, 16, v16")
    e("v_lshl_add_u32 v23, v7, 13, v23")
    e("v_bfe_u32 v8, v1, 3, 1"); e("v_lshl_add_u32 v23, v8, 5, v23")
    e("v_and_b32 v8, 2, v1"); e("v_lshl_add_u32 v23, v8, 3, v23")
    e("v_and_b32 v8, 1, v1"); e("v_lshl_add_u32 v23, v8, 6, v23")
    e("v_lshlrev_b32 v21, 2, v1")
    e(f"s_and_b32 {T1}, s3, 3"); e(f"s_lshl_b32 {T1}, {T1}, 9"); e(f"v_add_u32 v24, {T1}, v21")
    e("v_mov_b32 v253, s51")
    e("s_cmp_ge_u32 s3, 4"); e("s_cbranch_scc1 L_nopv")
    def mask(s_):
        for t in range(8):
            for u in range(4):
                e(f"v_cndmask_b32 v{200+4*t+u}, 0, v{192+4*s_+u}, s[{64+2*t}:{65+2*t}]")
    def pv(s_,hh,first):
        acc=244+4*hh
        base=64+64*s_+32*hh
        for c in range(4):
            tb=(36 if c%2==0 else 44)
            for u in range(4):
                e(f"v_perm_b32 v{tb+u}, v{base+4*(2*u+1)+c}, v{base+4*(2*u)+c}, s60")
            for u in range(4):
                e(f"v_perm_b32 v{tb+4+u}, v{base+4*(2*u+1)+c}, v{base+4*(2*u)+c}, s61")
            for par in range(2):
                t=2*c+par
                C="0" if (first and c==0 and par==0) else f"v[{acc}:{acc+3}]"
                e(f"v_mfma_f32_16x16x32_bf16 v[{acc}:{acc+3}], v[{tb+4*par}:{tb+4*par+3}], v[{200+4*t}:{203+4*t}], {C}")
    tailcnt=0
    mask(0)
    e(f"s_waitcnt vmcnt({24+tailcnt})"); pv(0,0,True)
    e(f"s_waitcnt vmcnt({16+tailcnt})"); pv(0,1,True)
    mask(1)
    e(f"s_waitcnt vmcnt({8+tailcnt})"); pv(1,0,False)
    e(f"s_lshl_b32 {T1}, s3, 11"); e(f"v_add_u32 v22, {T1}, v21")
    for r in range(4): e(f"ds_write_b32 v22, v{244+r} offset:{L_OR+r*256}")
    e(f"s_waitcnt vmcnt({tailcnt})")
    ST("V1done")
    pv(1,1,False)
    for r in range(4): e(f"ds_write_b32 v22, v{248+r} offset:{L_OR+1024+r*256}")
    e("L_nopv:")
    e(f"s_lshl_b32 {T0}, s48, 17"); e(f"s_lshl_b32 {T1}, s49, 7"); e(f"s_add_u32 {T0}, {T0}, {T1}"); e(f"s_add_u32 {T0}, {T0}, {WS_OB}")
    e(f"s_bfe_u32 {T1}, s3, 0x10001"); e(f"s_lshl_b32 {T1}, {T1}, 15"); e(f"s_add_u32 {T0}, {T0}, {T1}")
    e(f"s_and_b32 {T1}, s3, 1"); e(f"s_lshl_b32 {T1}, {T1}, 12"); e(f"s_add_u32 {T0}, {T0}, {T1}")
    e("s_mov_b32 s64, 0x55555555"); e("s_mov_b32 s65, 0x55555555")
    e("s_waitcnt lgkmcnt(0)")
    e("s_barrier")
    e("s_cmp_ge_u32 s3, 4"); e("s_cbranch_scc1 L_nopub")
    for k in range(4): e(f"ds_read_b32 v{192+k}, v24 offset:{L_OR+2048*k}")
    for k in range(4): e(f"ds_read_b32 v{196+k}, v24 offset:{L_OR+2048*k+256}")
    e("s_waitcnt lgkmcnt(0)")
    e("v_mul_f32 v252, v192, v232"); e("v_mul_f32 v254, v196, v232")
    for k in range(1,4): e(f"v_fmac_f32 v252, v{192+k}, v{232+k}"); e(f"v_fmac_f32 v254, v{196+k}, v{232+k}")
    e("v_mov_b32_dpp v192, v252 quad_perm:[1,0,3,2] row_mask:0xf bank_mask:0xf")
    e("v_mov_b32_dpp v193, v254 quad_perm:[1,0,3,2] row_mask:0xf bank_mask:0xf")
    e("v_cndmask_b32 v196, v193, v252, s[64:65]")
    e("v_cndmask_b32 v198, v254, v192, s[64:65]")
    e("v_mov_b32 v197, s51"); e("v_mov_b32 v199, s51")
    e("s_cmp_lg_u32 s62, 0"); e("s_cbranch_scc1 L_pubslow")
    e(f"buffer_store_dwordx4 v[196:199], v23, s[40:43], {T0} offen")
    e("s_branch L_nopub")
    e("L_pubslow:")
    e(f"buffer_store_dwordx4 v[196:199], v23, s[40:43], {T0} offen sc1")
    e("L_nopub:")
    ST("pub")
    e("s_cmp_lt_u32 s3, 4"); e("s_cbranch_scc1 L_nowo")
    e(f"s_and_b32 {T1}, s3, 3"); e(f"s_mul_i32 {T1}, {T1}, 3584")
    e("v_lshlrev_b32 v20, 4, v1"); e(f"v_add_u32 v20, {T1}, v20")
    e("s_waitcnt vmcnt(0)")
    e("s_mov_b32 exec_hi, 0x00ffffff")
    for n in range(4): e(f"ds_write_b128 v20, v[{64+4*n}:{67+4*n}] offset:{L_WO+896*n}")
    e("s_mov_b64 exec, -1")
    e("L_nowo:")
    e("s_cmp_lg_u32 s3, 7"); e("s_cbranch_scc1 L_nob")
    e("v_bfe_u32 v8, v1, 1, 4"); e("v_lshlrev_b32 v25, 7, v8")
    e("v_lshrrev_b32 v9, 5, v1"); e("v_lshl_add_u32 v25, v9, 6, v25")
    e("v_and_b32 v9, 1, v1"); e("v_lshl_add_u32 v25, v9, 5, v25")
    e("v_lshlrev_b32 v26, 4, v8")
    e(f"s_lshl_b32 {T0}, s48, 17"); e(f"s_lshl_b32 {T1}, s49, 12"); e(f"s_add_u32 {T0}, {T0}, {T1}"); e(f"s_add_u32 {T0}, {T0}, {WS_OB}")
    e(f"s_lshl_b32 {T1}, s48, 1"); e("s_lshr_b32 s63, s49, 4"); e(f"s_add_u32 {T1}, {T1}, s63"); e(f"s_lshl_b32 {T1}, {T1}, 9"); e(f"s_add_u32 {T1}, {T1}, {WS_ML}")
    e(f"s_mov_b32 {SPIN}, {spin_limit}")
    e("s_mov_b32 s63, 0")
    e("L_bpoll:")
    e("s_add_u32 s63, s63, 1")
    e(f"buffer_load_dwordx4 v[128:131], v25, s[40:43], {T0} offen sc1")
    e(f"buffer_load_dwordx4 v[132:135], v25, s[40:43], {T0} offen offset:16 sc1")
    e(f"buffer_load_dwordx4 v[136:139], v25, s[40:43], {T0} offen offset:2048 sc1")
    e(f"buffer_load_dwordx4 v[140:143], v25, s[40:43], {T0} offen offset:2064 sc1")
    e(f"buffer_load_dwordx4 v[144:147], v26, s[40:43], {T1} offen sc1")
    e(f"buffer_load_dwordx4 v[148:151], v26, s[40:43], {T1} offen offset:256 sc1")
    e("s_waitcnt vmcnt(0)")
    if stamp and "Bfirst" in stamp:
        e("s_cmp_lg_u32 s63, 1"); e("s_cbranch_scc1 L_nf"); ST("Bfirst"); e("L_nf:")
    e("v_min3_u32 v152, v129, v131, v133"); e("v_max3_u32 v153, v129, v131, v133")
    for a,b in ((135,137),(139,141),(143,145),(147,149)):
        e(f"v_min3_u32 v152, v152, v{a}, v{b}"); e(f"v_max3_u32 v153, v153, v{a}, v{b}")
    e("v_min_u32 v152, v152, v151"); e("v_max_u32 v153, v153, v151")
    e("v_xor_b32 v152, s51, v152"); e("v_xor_b32 v153, s51, v153"); e("v_or_b32 v152, v152, v153")
    e("v_cmp_ne_u32 vcc, 0, v152")
    e("s_cbranch_vccz L_bok")
    e(f"s_sub_u32 {SPIN}, {SPIN}, 1"); e(f"s_cmp_lg_u32 {SPIN}, 0"); e("s_cbranch_scc1 L_bpoll")
    e("L_bok:")
    ST("Bok")
    def allred(op,reg,tmp):
        for s_ in (2,4,8):
            e(f"{op}_dpp v{reg}, v{reg}, v{reg} row_ror:{s_} row_mask:0xf bank_mask:0xf")
        e(f"v_mov_b32 v{tmp}, v{reg}"); e(f"v_permlane16_swap_b32 v{tmp}, v{reg}"); e(f"{op} v{reg}, v{reg}, v{tmp}")
    e("v_max_f32 v152, v144, v148")
    allred("v_max_f32",152,153)
    e("v_sub_f32 v144, v144, v152"); e("v_sub_f32 v148, v148, v152")
    e("v_exp_f32 v144, v144"); e("v_exp_f32 v148, v148")
    e("v_mul_f32 v154, v144, v146"); e("v_fmac_f32 v154, v148, v150")
    for k in range(4): e(f"v_mul_f32 v{156+k}, v144, v{128+2*k}")
    for k in range(4): e(f"v_fmac_f32 v{156+k}, v148, v{136+2*k}")
    vals=[154,156,157,158,159]
    for s_ in (2,4,8):
        for r in vals: e(f"v_add_f32_dpp v{r}, v{r}, v{r} row_ror:{s_} row_mask:0xf bank_mask:0xf")
    for i,r in enumerate(vals): e(f"v_mov_b32 v{160+i}, v{r}")
    for i,r in enumerate(vals): e(f"v_permlane16_swap_b32 v{160+i}, v{r}")
    for i,r in enumerate(vals): e(f"v_add_f32 v{r}, v{r}, v{160+i}")
    e("v_rcp_f32 v154, v154")
    for k in range(4): e(f"v_mul_f32 v{156+k}, v{156+k}, v154")
    e("v_cvt_pk_bf16_f32 v160, v156, v157"); e("v_cvt_pk_bf16_f32 v161, v158, v159")
    e("v_lshlrev_b32 v156, 16, v160"); e("v_and_b32 v157, 0xffff0000, v160")
    e("v_lshlrev_b32 v158, 16, v161"); e("v_and_b32 v159, 0xffff0000, v161")
    e("v_lshrrev_b32 v8, 5, v1"); e("v_lshlrev_b32 v8, 5, v8"); e("v_lshl_add_u32 v8, v9, 4, v8")
    e("s_mov_b32 exec_lo, 3"); e("s_mov_b32 exec_hi, 3")
    e(f"ds_write_b128 v8, v[156:159] offset:{L_OV}")
    e("s_mov_b64 exec, -1")
    e("L_nob:")
    e("v_lshrrev_b32 v20, 5, v1"); e("v_mul_u32_u24 v20, 7168, v20"); e("v_and_b32 v8, 31, v1"); e("v_lshl_add_u32 v20, v8, 2, v20")
    e(f"s_lshl_b32 {T1}, s3, 7"); e(f"v_add_u32 v20, {T1}, v20")
    e("v_lshrrev_b32 v8, 5, v1"); e("v_lshlrev_b32 v8, 5, v8")
    e("v_lshrrev_b32 v27, 2, v1"); e("v_lshlrev_b32 v27, 14, v27")
    e("v_lshl_add_u32 v27, v10, 4, v27")
    e(f"s_lshl_b32 {T0}, s3, 17"); e(f"s_lshl_b32 {T1}, s48, 11"); e(f"s_add_u32 {T0}, {T0}, {T1}"); e(f"s_lshl_b32 {T1}, s49, 6"); e(f"s_add_u32 {T0}, {T0}, {T1}"); e(f"s_add_u32 {T0}, {T0}, {WS_OC}")
    e("v_mov_b32 v105, s51"); e("v_mov_b32 v107, s51")
    e("s_waitcnt lgkmcnt(0)")
    e("s_barrier")
    ST("B5")
    e("s_cmp_eq_u32 s3, 7"); e("s_cbranch_scc1 L_stageC")
    for r8 in range(8): e(f"ds_read_b32 v{28+r8}, v20 offset:{L_WO+896*r8}")
    e(f"ds_read_b128 v[96:99], v8 offset:{L_OV}")
    e(f"ds_read_b128 v[100:103], v8 offset:{L_OV+16}")
    e("s_waitcnt lgkmcnt(2)")
    for r8 in range(8):
        e(f"v_lshlrev_b32 v{36+2*r8}, 16, v{28+r8}"); e(f"v_and_b32 v{37+2*r8}, 0xffff0000, v{28+r8}")
    e("s_waitcnt lgkmcnt(0)")
    e("v_mul_f32 v104, v96, v36"); e("v_mul_f32 v106, v96, v37")
    for r8 in range(1,8):
        e(f"v_fmac_f32 v104, v{96+r8}, v{36+2*r8}"); e(f"v_fmac_f32 v106, v{96+r8}, v{37+2*r8}")
    e("v_mov_b32 v108, v104"); e("v_mov_b32 v109, v106")
    e("v_permlane32_swap_b32 v108, v104"); e("v_permlane32_swap_b32 v109, v106")
    e("v_add_f32 v104, v104, v108"); e("v_add_f32 v106, v106, v109")
    e("s_mov_b32 exec_hi, 0")
    e(f"buffer_store_dwordx4 v[104:107], v27, s[40:43], {T0} offen sc1")
    e("s_mov_b64 exec, -1")
    ST("Cpub")
    e("L_stageC:")
    e(f"s_cmp_ge_u32 s2, {NRED}"); e("s_cbranch_scc1 L_end")
    e(f"s_lshl_b32 {T0}, s2, 14"); e(f"s_lshl_b32 {T1}, s3, 11"); e(f"s_add_u32 {T0}, {T0}, {T1}"); e(f"s_add_u32 {T0}, {T0}, {WS_OC}")
    e("v_lshlrev_b32 v14, 4, v1")
    e(f"s_mov_b32 {SPIN}, {spin_limit}")
    e("L_cpoll:")
    e(f"buffer_load_dwordx4 v[128:131], v14, s[40:43], {T0} offen sc1")
    e(f"buffer_load_dwordx4 v[132:135], v14, s[40:43], {T0} offen offset:1024 sc1")
    e("s_waitcnt vmcnt(0)")
    e("v_min3_u32 v96, v129, v131, v133"); e("v_max3_u32 v97, v129, v131, v133")
    e("v_min_u32 v96, v96, v135"); e("v_max_u32 v97, v97, v135")
    e("v_xor_b32 v96, s51, v96"); e("v_xor_b32 v97, s51, v97"); e("v_or_b32 v96, v96, v97")
    e("v_cmp_ne_u32 vcc, 0, v96")
    e("s_cbranch_vccz L_cok")
    e(f"s_sub_u32 {SPIN}, {SPIN}, 1"); e(f"s_cmp_lg_u32 {SPIN}, 0"); e("s_cbranch_scc1 L_cpoll")
    e("L_cok:")
    ST("Cok")
    e("v_add_f32 v128, v128, v132"); e("v_add_f32 v130, v130, v134")
    for s_ in (4,8):
        e(f"v_add_f32_dpp v128, v128, v128 row_ror:{s_} row_mask:0xf bank_mask:0xf")
        e(f"v_add_f32_dpp v130, v130, v130 row_ror:{s_} row_mask:0xf bank_mask:0xf")
    for sw in ("16","32"):
        e("v_mov_b32 v96, v128"); e("v_mov_b32 v97, v130")
        e(f"v_permlane{sw}_swap_b32 v96, v128"); e(f"v_permlane{sw}_swap_b32 v97, v130")
        e("v_add_f32 v128, v128, v96"); e("v_add_f32 v130, v130, v97")
    e("v_mov_b32 v129, v130")
    e(f"s_lshl_b32 {T1}, s3, 5"); e("v_lshlrev_b32 v99, 3, v1"); e(f"v_add_u32 v98, {T1}, v99")
    e("s_mov_b32 exec_lo, 0xf"); e("s_mov_b32 exec_hi, 0")
    e(f"ds_write_b64 v98, v[128:129] offset:{L_RC}")
    e("s_mov_b64 exec, -1")
    e("s_waitcnt lgkmcnt(0)")
    e("s_barrier")
    e("s_cmp_lg_u32 s3, 0"); e("s_cbranch_scc1 L_end")
    e("s_mov_b32 exec_lo, 0xf"); e("s_mov_b32 exec_hi, 0")
    for k in range(8): e(f"ds_read_b64 v[{128+2*k}:{129+2*k}], v99 offset:{L_RC+32*k}")
    e(f"s_lshl_b32 {T1}, s2, 4")
    e("v_lshlrev_b32 v99, 2, v1")
    e("s_waitcnt lgkmcnt(0)")
    for stp in (2,4,8):
        for k in range(0,16,2*stp):
            e(f"v_add_f32 v{128+k}, v{128+k}, v{128+k+stp}"); e(f"v_add_f32 v{129+k}, v{129+k}, v{129+k+stp}")
    e("v_cvt_pk_bf16_f32 v98, v128, v129")
    e(f"buffer_store_dword v98, v99, s[44:47], {T1} offen")
    e("s_cmp_lg_u32 s2, 0"); e("s_cbranch_scc1 L_end")
    e("s_mov_b32 exec_lo, 1")
    e("v_mov_b32 v100, s50"); e("v_mov_b32 v101, 0")
    e("buffer_store_dword v100, v101, s[40:43], 0 offen sc1")
    e("L_end:")
    if stamp:
        ST("end")
        n=nst[0]
        e("s_mov_b64 exec, -1")
        e("s_waitcnt lgkmcnt(0)")
        e(f"s_lshl_b32 {T0}, s2, 3"); e(f"s_add_u32 {T0}, {T0}, s3"); e(f"s_lshl_b32 {T0}, {T0}, 6"); e(f"s_add_u32 {T0}, {T0}, {WS_STAMP}")
        for i in range(16):
            e(f"v_mov_b32 v{96+i}, s{SREG(i)}" if i<n else (f"v_mov_b32 v{96+i}, s63" if i==15 else f"v_mov_b32 v{96+i}, 0"))
        e("v_mov_b32 v112, 0")
        e("s_mov_b32 exec_lo, 1"); e("s_mov_b32 exec_hi, 0")
        for q in range(4):
            e(f"buffer_store_dwordx4 v[{96+4*q}:{99+4*q}], v112, s[40:43], {T0} offen offset:{16*q}")
    e("L_done:"); e("s_endpgm")
    e('.section .rodata,"a"'); e(".p2align 6"); e(f".amdhsa_kernel {NAME}")
    e("  .amdhsa_next_free_vgpr 256"); e(f"  .amdhsa_next_free_sgpr 102"); e("  .amdhsa_accum_offset 256")
    e("  .amdhsa_group_segment_fixed_size 0"); e("  .amdhsa_kernarg_size 64"); e("  .amdhsa_user_sgpr_count 2")
    e("  .amdhsa_user_sgpr_kernarg_segment_ptr 1"); e("  .amdhsa_system_sgpr_workgroup_id_x 1"); e(".end_amdhsa_kernel")
    if stamp: open("stampnames.txt","w").write(",".join(names))
    return "\n".join(pad(o,verbose=True))+"\n"

STAMPS=["entry","Kiss","qrdy","soft","qpub","Viss","P","V1done","pub","Bfirst","Bok","B5","Cpub","Cok","end"]
if __name__=="__main__":
    from build import build
    open("k8.s","w").write(gen()); build("k8.s","k8.co")
    open("k8slow.s","w").write(gen(force_slow=True)); build("k8slow.s","k8slow.co")
    open("k8s.s","w").write(gen(stamp=STAMPS)); build("k8s.s","k8s.co")
    open("k8s8.s","w").write(gen(stamp=STAMPS,k1=8)); build("k8s8.s","k8s8.co")
    open("k8s12.s","w").write(gen(stamp=STAMPS,k1=12)); build("k8s12.s","k8s12.co")
```

```python
import re

TRANS = ("v_exp_f32","v_log_f32","v_rcp_f32","v_rsq_f32","v_sqrt_f32","v_sin_f32","v_cos_f32")

def split_ops(s):
    out=[];depth=0;cur=""
    for ch in s:
        if ch in "[(": depth+=1
        if ch in "])": depth-=1
        if ch=="," and depth==0:
            out.append(cur.strip());cur=""
        else: cur+=ch
    if cur.strip(): out.append(cur.strip())
    return out

def regs(op):
    op=op.strip()
    op=op.lstrip("-")
    m=re.match(r"^abs\((.*)\)$",op)
    if m: op=m.group(1)
    op=op.split()[0] if op else op
    m=re.match(r"^([vsa])\[(\d+):(\d+)\]$",op)
    if m: return {(m.group(1),i) for i in range(int(m.group(2)),int(m.group(3))+1)}
    m=re.match(r"^([vsa])(\d+)$",op)
    if m: return {(m.group(1),int(m.group(2)))}
    if op in("vcc",): return {("s","vcc_lo"),("s","vcc_hi")}
    if op in("vcc_lo","vcc_hi"): return {("s",op)}
    if op=="exec": return {("s","exec_lo"),("s","exec_hi")}
    if op in("exec_lo","exec_hi","m0"): return {("s",op)}
    return set()

class Ins:
    def __init__(s,text):
        s.text=text
        t=text.strip()
        s.is_label=t.endswith(":")
        s.is_dir=t.startswith(".") or t.startswith(";") or t==""
        s.mn="";s.defs=set();s.uses=set();s.kind="other";s.dpp=False;s.srcC=set();s.store_data=set()
        if s.is_label or s.is_dir: return
        t=t.split(";")[0].strip()
        parts=t.split(None,1)
        s.mn=parts[0]
        rest=parts[1] if len(parts)>1 else ""
        ops=split_ops(rest)
        s.dpp = any(k in rest for k in ("quad_perm","row_ror","row_shr","row_shl","row_bcast","row_mirror","row_half_mirror","wave_"))
        mn=s.mn
        R=[regs(o) for o in ops]
        if mn.startswith("v_mfma"):
            s.kind="mfma"; s.defs=R[0]; s.uses=R[1]|R[2]|R[3]; s.srcC=R[3]; s.srcAB=R[1]|R[2]
        elif mn.startswith("v_permlane") and "swap" in mn:
            s.kind="valu"; s.perml=True; s.defs=R[0]|R[1]; s.uses=R[0]|R[1]
        elif mn.startswith("v_readfirstlane") or mn.startswith("v_readlane"):
            s.kind="valu"; s.rdlane=True; s.defs=R[0]; s.uses=set().union(*R[1:])
        elif mn.startswith("v_cmp"):
            s.kind="valu"; s.defs=R[0]; s.uses=set().union(*R[1:])
        elif mn.startswith("v_"):
            s.kind="valu"; s.defs=R[0]; s.uses=set().union(*R[1:]) if len(R)>1 else set()
            if mn.startswith("v_fmac") or mn.startswith("v_dot2c") or s.dpp: s.uses|=R[0]
            if mn.startswith("v_cndmask") and len(ops)==3: s.uses|=regs("vcc")
            if mn.startswith("v_add_co") or mn.startswith("v_addc_co") or mn.startswith("v_sub_co"):
                s.defs=R[0]|R[1]; s.uses=set().union(*R[2:])
        elif mn.startswith("buffer_load") or mn.startswith("global_load"):
            s.kind="vmem"; s.defs=R[0]; s.uses=set().union(*R[1:])
        elif mn.startswith("buffer_store") or mn.startswith("buffer_atomic"):
            s.kind="vmem"; s.uses=set().union(*R)
            if mn.endswith("x4") or mn.endswith("x3"): s.store_data=R[0]
        elif mn.startswith("global_store"):
            s.kind="vmem"; s.uses=set().union(*R)
            if mn.endswith("x4") or mn.endswith("x3"): s.store_data=R[1]
        elif mn.startswith("ds_read") or mn.startswith("ds_bpermute") or mn.startswith("ds_swizzle"):
            s.kind="ds"; s.defs=R[0]; s.uses=set().union(*R[1:])
        elif mn.startswith("ds_"):
            s.kind="ds"; s.uses=set().union(*R)
        elif mn.startswith("s_"):
            s.kind="salu"
            if mn in("s_nop","s_waitcnt","s_barrier","s_endpgm","s_branch","s_setprio","s_sleep") or mn.startswith("s_cbranch") or mn.startswith("s_cmp"):
                s.uses=set().union(*R) if R else set()
            else:
                s.defs=R[0] if R else set(); s.uses=set().union(*R[1:]) if len(R)>1 else set()
        s.trans = mn.replace("_e32","").replace("_e64","") in TRANS
    def states(s):
        if s.is_label or s.is_dir: return 0
        if s.mn=="s_nop": return int(s.text.split()[1],0)+1
        return 1

def vg(x): return {r for r in x if r[0] in "va"}
def sg(x): return {r for r in x if r[0]=="s"}

def need(prod,cons):
    n=0
    pv=vg(prod.defs);
    if prod.kind=="valu":
        if cons.kind=="mfma" and (pv & vg(cons.uses)): n=max(n,2)
        if cons.kind=="valu" and cons.dpp and (pv & vg(cons.uses)): n=max(n,2)
        if cons.kind=="valu" and getattr(cons,"perml",False) and (pv & vg(cons.uses)): n=max(n,2)
        if cons.kind=="valu" and getattr(cons,"rdlane",False) and (pv & vg(cons.uses)): n=max(n,1)
        if prod.trans and cons.kind in("valu","mfma") and not cons.trans and (pv & vg(cons.uses)): n=max(n,1)
        if prod.trans and cons.kind in("valu",) and cons.trans and (pv & vg(cons.uses)): n=max(n,1)
        ps=sg(prod.defs)
        if ps:
            if cons.kind=="valu" and (ps & sg(cons.uses)): n=max(n,4 if getattr(cons,"rdlane",False) else 2)
            if cons.kind=="vmem" and (ps & sg(cons.uses)): n=max(n,5)
            if cons.kind=="salu" and (ps & sg(cons.uses)): n=max(n,1)
    if prod.kind=="mfma":
        P=8 if "32x32" in prod.mn else 4
        raw={4:8,8:12}[P]; ovl={4:6,8:10}[P]; war={4:3,8:7}[P]
        if cons.kind=="mfma":
            if pv & vg(cons.srcAB): n=max(n,raw)
            if pv & vg(cons.srcC) and not (cons.srcC==prod.defs): n=max(n,ovl)
            if pv & vg(cons.defs) and not (cons.defs==prod.defs): n=max(n,ovl)
        elif cons.kind in("valu","vmem","ds"):
            if pv & (vg(cons.uses)|vg(cons.defs)): n=max(n,raw)
            if cons.kind=="valu" and (vg(prod.srcC) & vg(cons.defs)): n=max(n,war)
    if prod.kind=="vmem" and prod.store_data:
        if cons.kind=="valu" and (prod.store_data & vg(cons.defs)): n=max(n,2)
        elif cons.kind in("vmem","ds","mfma") and (prod.store_data & vg(cons.defs)): n=max(n,1)
    return n

def pad(lines, verbose=False):
    out=[]; cur=[]; snaps={}
    total=0; dead=False
    def advance(state, k):
        return [[p,d+k] for p,d in state if d+k<24]
    for ln in lines:
        ins=Ins(ln)
        if ins.is_label:
            lab=ln.strip()[:-1]
            alts=snaps.pop(lab,[])
            if not dead: alts=alts+[cur]
            merged={}
            for st in alts:
                for p,d in st:
                    k=id(p)
                    if k not in merged or d<merged[k][1]: merged[k]=[p,d]
            cur=list(merged.values())
            dead=False
            out.append(ln); continue
        if ins.is_dir:
            out.append(ln); continue
        req=0
        for p,d in cur:
            r=need(p,ins)
            if r>d: req=max(req,r-d)
        while req>0:
            k=min(req,16)
            out.append(f"s_nop {k-1}")
            cur=advance(cur,k); req-=k; total+=k
        out.append(ln)
        cur=advance(cur,ins.states())
        cur.append([ins,0])
        if ins.mn=="s_branch" or ins.mn.startswith("s_cbranch"):
            lab=ln.split()[1]
            snaps.setdefault(lab,[]).append([[p,d] for p,d in cur])
            if ins.mn=="s_branch": dead=True
        if ins.mn=="s_endpgm": dead=True
    if verbose: print("nop states inserted:",total)
    return out
```

```python
import sys, struct
from asmlib import pad

NAME="standalone__gqa_block_cached__decode_kernel"
def f32hex(x): return "0x%08x"%struct.unpack("<I",struct.pack("<f",x))[0]

WS_EPOCH=0
WS_ML=0x6000
WS_QA=0x40000
WS_QS=0x60000
WS_OB=0x100000
WS_OC=0x200000
WS_OD=0x300000
WS_STAMP=0x400000
WS_SIZE=0x800000
NRED=28
L_CNT=1024
L_MX=1088
L_LS=1152
L_OV=1216
L_RC=1280
L_P=2048
L_OR=10240
L_QB=18432
L_WO=19456
L_QP=19456+14336
L_TOTAL=19456+14336+4096

def SREG(i): return 80+2*i if i<10 else 4+2*(i-10)
T0,T1="s0","s1"
SPIN="s100"; CC="s101"
TAG="s51"

def gen(stamp=None, nt=" nt", spin_limit=200000, force_slow=False, k0=5, k1=12, evenW=0, earlyml=True, cspec=True):
    o=[]; e=o.append
    nst=[0]; names=[]
    def ST(name):
        if stamp and (name in stamp):
            if name in names: i=names.index(name)
            else:
                i=nst[0]; nst[0]+=1; names.append(name)
            r=SREG(i); e(f"s_memrealtime s[{r}:{r+1}]")
    def srd(d,lo,size):
        e(f"s_mov_b32 s{d}, s{lo}"); e(f"s_mov_b32 s{d+1}, s{lo+1}"); e(f"s_mov_b32 s{d+2}, {size}"); e(f"s_mov_b32 s{d+3}, 0x20000")
    def execm(lo,hi):
        e(f"s_mov_b32 exec_lo, {lo}"); e(f"s_mov_b32 exec_hi, {hi}")
    def execall(): e("s_mov_b64 exec, -1")
    lab=[0]
    def lds_wait(addr_v, off, cond, tmp_v="v21", tmp_s="s0"):
        lab[0]+=1; L=f"L_w{lab[0]}"
        e(f"s_mov_b32 {SPIN}, {spin_limit}")
        e(f"{L}:")
        e(f"ds_read_b32 {tmp_v}, {addr_v} offset:{off}")
        e("s_waitcnt lgkmcnt(0)")
        e(f"v_readfirstlane_b32 {tmp_s}, {tmp_v}")
        e(f"s_sub_u32 {SPIN}, {SPIN}, 1"); e(f"s_cmp_eq_u32 {SPIN}, 0"); e(f"s_cbranch_scc1 {L}x")
        cond(tmp_s)
        e(f"s_cbranch_scc1 {L}")
        e(f"{L}x:")
    def lds_signal(addr_v, off, val_v):
        execm(1,0); e(f"ds_add_u32 {addr_v}, {val_v} offset:{off}"); execall()
    thr=[0]
    def parity_scc():
        e("s_getreg_b32 s0, hwreg(HW_REG_XCC_ID)"); e("s_and_b32 s0, s0, 1"); e("s_cmp_eq_u32 s0, 0")
    def throttle(n_issued):
        if evenW and n_issued>=evenW:
            thr[0]+=1
            e(f"s_cbranch_scc0 L_thr{thr[0]}"); e(f"s_waitcnt vmcnt({evenW-1})"); e(f"L_thr{thr[0]}:")
    def store2(ins_plain):
        lab[0]+=1; L=f"L_s{lab[0]}"
        e("s_cmp_lg_u32 s62, 0"); e(f"s_cbranch_scc1 {L}a")
        e(ins_plain); e(f"s_branch {L}b")
        e(f"{L}a:"); e(ins_plain+" sc1"); e(f"{L}b:")

    hdr=open("standalone__gqa_block_cached__decode.s.ref").read().split("\n")
    for l in hdr:
        if l.startswith("; Kernarg") or l.startswith(";   offset"): e(l)
    e(f"; @launch grid=(256,1,1) block=(512,1,1) lds={L_TOTAL}")
    e('.amdgcn_target "amdgcn-amd-amdhsa--gfx950"')
    e(".text"); e(f".globl {NAME}"); e(".p2align 8"); e(f".type {NAME},@function"); e(f"{NAME}:")
    ST("entry")
    e("s_cmp_ge_u32 s2, 256"); e("s_cbranch_scc1 L_done")
    e("s_load_dwordx16 s[4:19], s[0:1], 0")
    e("v_and_b32 v1, 63, v0")
    e("v_lshrrev_b32 v2, 6, v0")
    e("s_and_b32 s48, s2, 7")
    e("s_lshr_b32 s49, s2, 3")
    e("v_readfirstlane_b32 s3, v2")
    e("v_lshrrev_b32 v7, 4, v1")
    e("v_and_b32 v10, 3, v1")
    e("v_bfe_u32 v16, v1, 2, 1")
    e("s_lshl_b32 s52, s48, 22"); e(f"s_lshl_b32 {T0}, s49, 17"); e(f"s_add_u32 s52, s52, {T0}")
    e(f"s_and_b32 {T0}, s3, 3"); e(f"s_lshl_b32 {T0}, {T0}, 15"); e(f"s_add_u32 s52, s52, {T0}")
    for i in range(1,8): e(f"s_add_u32 s{52+i}, s52, {4096*i}")
    e(f"v_mov_b32 v22, {L_CNT}")
    e("v_lshlrev_b32 v14, 4, v1")
    for i in range(24,28): e(f"v_mov_b32 v{i}, 0")
    e("s_cmp_lt_u32 s3, 4"); e("s_cbranch_scc1 L_vwave")
    def common_consts():
        e("s_getreg_b32 s62, hwreg(HW_REG_XCC_ID)"); e("s_and_b32 s62, s62, 7")
        srd(36,12,3670016); srd(40,18,WS_SIZE); srd(44,14,896)
        e(f"s_mov_b32 {CC}, {f32hex(1.4426950408889634/16)}")
    def tags():
        e("s_add_u32 s50, s50, 1"); e(f"s_lshl_b32 {TAG}, s50, 3"); e(f"s_or_b32 s63, {TAG}, s62")
    e("v_lshlrev_b32 v2, 6, v7")
    e("v_bfe_u32 v8, v1, 2, 2")
    e("v_lshl_add_u32 v2, v8, 9, v2")
    e("v_lshl_add_u32 v2, v10, 4, v2")
    e("s_waitcnt lgkmcnt(0)")
    srd(20,6,0x2000000)
    def kload(n):
        of=(n//2)*2048+(n%2)*256
        e(f"buffer_load_dwordx4 v[{64+4*n}:{67+4*n}], v2, s[20:23], s{52+of//4096} offen offset:{of%4096}{nt}")
    for n in range(k0): kload(n)
    e("s_barrier")
    for n in range(k0,k1): kload(n)
    e("s_load_dword s50, s[18:19], 0")
    common_consts()
    lds_wait("v22",4,lambda t: e(f"s_cmp_eq_u32 {t}, 0"))
    if evenW: parity_scc()
    for n in range(k1,32):
        throttle(n); kload(n)
    tags()
    e(f"s_lshl_b32 {T0}, s48, 14"); e(f"s_and_b32 {T1}, s3, 3"); e(f"s_lshl_b32 {T1}, {T1}, 10"); e(f"s_add_u32 {T0}, {T0}, {T1}"); e(f"s_add_u32 s98, {T0}, {WS_QA}" if not stamp else f"s_add_u32 s47, {T0}, {WS_QA}")
    GB="s98" if not stamp else "s47"
    e("v_add_u32 v15, 4096, v14"); e("v_add_u32 v17, 0x2000, v14"); e("v_add_u32 v18, 0x3000, v14")
    def gload():
        for p_,va in enumerate(("v14","v15","v17","v18")):
            e(f"buffer_load_dwordx4 v[{192+4*p_}:{195+4*p_}], {va}, s[40:43], {GB} offen sc1")
    gload()
    ST("Kiss")
    e("s_barrier")
    e(f"s_mov_b32 {SPIN}, {spin_limit}")
    e("s_waitcnt vmcnt(0)")
    e("L_qchk:")
    for i in range(8): e(f"v_xor_b32 v{208+i}, s63, v{193+2*i}")
    e("v_or3_b32 v208, v208, v209, v210"); e("v_or3_b32 v211, v211, v212, v213"); e("v_or3_b32 v208, v208, v214, v215"); e("v_or_b32 v208, v208, v211")
    e("v_cmp_le_u32 vcc, 8, v208")
    e("s_cbranch_vccz L_qok")
    e(f"s_sub_u32 {SPIN}, {SPIN}, 1"); e(f"s_cmp_eq_u32 {SPIN}, 0"); e("s_cbranch_scc1 L_qok")
    e(f"s_xor_b32 {GB}, {GB}, {WS_QA^WS_QS}")
    e("s_setprio 3")
    gload()
    e("s_setprio 0")
    e("s_waitcnt vmcnt(0)")
    e("s_branch L_qchk")
    e("L_qok:")
    if stamp: e(f"s_sub_u32 s63, {spin_limit}, {SPIN}"); e("s_mov_b32 s47, 0x20000")
    e("v_cmp_ne_u32 vcc, 0, v208")
    e("v_add_f32 v192, v192, v196"); e("v_add_f32 v194, v194, v198"); e("v_add_f32 v200, v200, v204"); e("v_add_f32 v202, v202, v206")
    e("v_add_f32 v192, v192, v200"); e("v_add_f32 v194, v194, v202")
    e("s_cmp_lg_u64 vcc, 0"); e("s_cselect_b32 s1, 0x101, 1")
    if force_slow: e("s_mov_b32 s1, 0x101")
    e("v_cvt_pk_bf16_f32 v192, v192, v194")
    e("s_and_b32 s0, s3, 3"); e("s_lshl_b32 s0, s0, 8")
    e("v_lshlrev_b32 v15, 2, v1"); e("v_add_u32 v15, s0, v15")
    e(f"ds_write_b32 v15, v192 offset:{L_QB}")
    e("v_mov_b32 v21, s1")
    e("v_lshlrev_b32 v17, 9, v16"); e("v_lshl_add_u32 v17, v7, 6, v17"); e("v_lshl_add_u32 v17, v10, 4, v17")
    e("s_waitcnt lgkmcnt(0)")
    lds_signal("v22",8,"v21")
    def c_q(t): e(f"s_and_b32 s1, {t}, 0xff"); e("s_cmp_lt_u32 s1, 4")
    lds_wait("v22",8,c_q,tmp_s="s62")
    e("s_lshr_b32 s62, s62, 8")
    e(f"ds_read_b128 v[224:227], v17 offset:{L_QB}")
    e(f"ds_read_b128 v[228:231], v17 offset:{L_QB+256}")
    e("s_waitcnt lgkmcnt(0)")
    ST("qrdy")
    for bt in range(2):
        for n in range(8):
            t=8*bt+n
            e(f"v_mfma_f32_16x16x32_bf16 v[{192+4*n}:{195+4*n}], v[{64+8*t}:{67+8*t}], v[224:227], 0")
        for n in range(8):
            t=8*bt+n
            e(f"v_mfma_f32_16x16x32_bf16 v[{192+4*n}:{195+4*n}], v[{68+8*t}:{71+8*t}], v[228:231], v[{192+4*n}:{195+4*n}]")
        for n in range(8):
            e(f"v_mov_b32_dpp v{232+8*bt+n}, v{192+4*n} quad_perm:[0,0,0,0] row_mask:0xf bank_mask:0xf")
        for r in (1,2,3):
            for n in range(8):
                e(f"v_add_f32_dpp v{232+8*bt+n}, v{192+4*n+r}, v{232+8*bt+n} quad_perm:[{r},{r},{r},{r}] row_mask:0xf bank_mask:0xf")
    e("v_max3_f32 v248, v232, v233, v234")
    for k in range(235,247,2): e(f"v_max3_f32 v248, v248, v{k}, v{k+1}")
    e("v_max_f32 v248, v248, v247")
    e("v_mov_b32 v249, v248"); e("v_permlane16_swap_b32 v249, v248"); e("v_max_f32 v248, v248, v249")
    e("v_mov_b32 v249, v248"); e("v_permlane32_swap_b32 v249, v248"); e("v_max_f32 v248, v248, v249")
    e(f"v_mul_f32 v248, {CC}, v248")
    for n in range(16): e(f"v_fma_f32 v{232+n}, v{232+n}, {CC}, -v248")
    for n in range(16): e(f"v_exp_f32 v{232+n}, v{232+n}")
    for u in range(8): e(f"v_cvt_pk_bf16_f32 v{192+u}, v{232+2*u}, v{233+2*u}")
    for u in range(4): e(f"v_mov_b32 v{200+u}, 0x3f803f80")
    e("v_mfma_f32_16x16x32_bf16 v[204:207], v[200:203], v[192:195], 0")
    e("v_mfma_f32_16x16x32_bf16 v[204:207], v[200:203], v[196:199], v[204:207]")
    e(f"s_and_b32 {T0}, s3, 3"); e(f"s_lshl_b32 {T1}, {T0}, 11")
    e(f"v_add_u32 v20, {T1}, v14")
    e(f"ds_write_b128 v20, v[192:195] offset:{L_P}")
    e(f"ds_write_b128 v20, v[196:199] offset:{L_P+1024}")
    e(f"s_lshl_b32 {T1}, {T0}, 2")
    e("v_lshlrev_b32 v18, 4, v16"); e(f"v_add_u32 v19, {T1}, v18")
    execm("0x11",0)
    e(f"ds_write_b32 v19, v248 offset:{L_MX}")
    e(f"ds_write_b32 v19, v204 offset:{L_LS}")
    execall()
    def ml_compute(mreg,lreg):
        e(f"v_max3_f32 v{mreg}, v232, v233, v234"); e(f"v_max_f32 v{mreg}, v{mreg}, v235")
        for k in range(4): e(f"v_sub_f32 v{232+k}, v{232+k}, v{mreg}")
        for k in range(4): e(f"v_exp_f32 v{232+k}, v{232+k}")
        e(f"v_mul_f32 v{lreg}, v232, v236")
        for k in range(1,4): e(f"v_fmac_f32 v{lreg}, v{232+k}, v{236+k}")
    def ml_publish():
        e(f"v_mov_b32 v192, v241"); e(f"v_mov_b32 v193, {TAG}"); e("v_mov_b32 v194, v242"); e(f"v_mov_b32 v195, {TAG}")
        e("v_lshlrev_b32 v8, 9, v16")
        e(f"s_lshl_b32 {T1}, s48, 10"); e(f"s_lshl_b32 {T0}, s49, 4"); e(f"s_add_u32 {T1}, {T1}, {T0}"); e(f"s_add_u32 {T1}, {T1}, {WS_ML}")
        execm("0x11",0)
        store2(f"buffer_store_dwordx4 v[192:195], v8, s[40:43], {T1} offen")
        execall()
    if earlyml:
        e("v_mov_b32 v21, 1")
        e("s_waitcnt lgkmcnt(0)")
        lds_signal("v22",16,"v21")
        e("s_cmp_lg_u32 s3, 4"); e("s_cbranch_scc1 L_noeml")
        lds_wait("v22",16,lambda t: e(f"s_cmp_lt_u32 {t}, 4"))
        e(f"ds_read_b128 v[232:235], v18 offset:{L_MX}")
        e(f"ds_read_b128 v[236:239], v18 offset:{L_LS}")
        e("s_waitcnt lgkmcnt(0)")
        ml_compute(241,242)
        ml_publish()
        e("L_noeml:")
    ST("soft")
    e("s_branch L_join")
    e("L_vwave:")
    e(f"s_lshr_b32 {T0}, s49, 3"); e(f"s_mul_i32 {T0}, {T0}, 112"); e(f"s_mul_i32 {T1}, s3, 28"); e(f"s_add_u32 {T0}, {T0}, {T1}")
    e(f"s_lshl_b32 {T1}, {T0}, 1"); e("v_lshlrev_b32 v6, 2, v1"); e(f"v_add_u32 v6, {T1}, v6")
    e("v_mov_b32 v9, 0x10000000"); e("v_cmp_gt_u32 vcc, 14, v1"); e("v_cndmask_b32 v6, v9, v6, vcc")
    e("v_lshrrev_b32 v8, 3, v1")
    e(f"v_add_u32 v4, {T0}, v8")
    e(f"s_lshl_b32 {T0}, s48, 10"); e(f"s_and_b32 {T1}, s49, 7"); e(f"s_lshl_b32 {T1}, {T1}, 7"); e(f"s_add_u32 {T0}, {T0}, {T1}")
    e("v_and_b32 v11, 7, v1"); e("v_lshlrev_b32 v12, 4, v11")
    e("v_lshl_add_u32 v4, v4, 13, v12"); e(f"v_add_u32 v4, {T0}, v4")
    e("v_add_u32 v13, 0x30000, v4"); e("v_cmp_gt_u32 vcc, 32, v1"); e("v_cndmask_b32 v13, v9, v13, vcc")
    e("v_add_u32 v5, 0x10000, v4"); e("v_add_u32 v15, 0x20000, v4")
    e("ds_write_b128 v22, v[24:27]"); e("ds_write_b128 v22, v[24:27] offset:16")
    e("s_waitcnt lgkmcnt(0)")
    srd(28,10,3670016); srd(32,4,896)
    e("buffer_load_dword v128, v6, s[32:35], 0 offen")
    e(f"buffer_load_dwordx4 v[132:135], v4, s[28:31], 0 offen{nt}")
    e(f"buffer_load_dwordx4 v[136:139], v5, s[28:31], 0 offen{nt}")
    e(f"buffer_load_dwordx4 v[140:143], v15, s[28:31], 0 offen{nt}")
    e(f"buffer_load_dwordx4 v[144:147], v13, s[28:31], 0 offen{nt}")
    e("s_barrier")
    e("s_load_dword s50, s[18:19], 0")
    common_consts()
    srd(24,8,0x2000000)
    e("s_mov_b32 s60, 0x05040100"); e("s_mov_b32 s61, 0x07060302")
    for t in range(8):
        p=((1<<t)|(1<<(4+t))) if t<4 else ((1<<(8+t-4))|(1<<(12+t-4)))
        p=p*0x00010001
        e(f"s_mov_b32 s{64+2*t}, {hex(p)}"); e(f"s_mov_b32 s{65+2*t}, {hex(p)}")
    e("v_and_b32 v9, 15, v1"); e("v_lshlrev_b32 v3, 9, v7"); e("v_lshl_add_u32 v3, v9, 4, v3")
    e("v_and_b32 v12, 1, v8"); e("v_lshlrev_b32 v12, 4, v12"); e("v_sub_u32 v12, 16, v12")
    e("v_lshlrev_b32 v8, 2, v7")
    e("v_lshlrev_b32 v11, 5, v11"); e("v_lshl_add_u32 v11, v7, 8, v11"); e(f"s_lshl_b32 {T0}, s3, 10"); e(f"v_add_u32 v11, {T0}, v11")
    e("s_waitcnt vmcnt(4)")
    for n in range(4):
        if n: e(f"v_add_u32 v9, {16*n}, v8")
        e(f"ds_bpermute_b32 v{148+n}, {'v9' if n else 'v8'}, v128")
    e("s_waitcnt lgkmcnt(0)")
    tags()
    for n in range(4):
        e(f"v_lshlrev_b32 v{148+n}, v12, v{148+n}"); e(f"v_and_b32 v{148+n}, 0xffff0000, v{148+n}")
    for n in range(4):
        e(f"s_waitcnt vmcnt({3-n})")
        for c in range(4):
            e(f"v_lshlrev_b32 v160, 16, v{132+4*n+c}"); e(f"v_and_b32 v161, 0xffff0000, v{132+4*n+c}")
            if n==0:
                e(f"v_mul_f32 v{152+2*c}, v160, v148"); e(f"v_mul_f32 v{153+2*c}, v161, v148")
            else:
                e(f"v_fmac_f32 v{152+2*c}, v160, v{148+n}"); e(f"v_fmac_f32 v{153+2*c}, v161, v{148+n}")
    for k in range(8):
        e(f"v_add_f32_dpp v{152+k}, v{152+k}, v{152+k} row_ror:8 row_mask:0xf bank_mask:0xf")
    execm("0x00ff00ff","0x00ff00ff")
    e(f"ds_write_b128 v11, v[152:155] offset:{L_QP}")
    e(f"ds_write_b128 v11, v[156:159] offset:{L_QP+16}")
    execall()
    e("v_mov_b32 v21, 1")
    e("s_waitcnt lgkmcnt(0)")
    lds_signal("v22",0,"v21")
    e("s_cmp_lg_u32 s3, 0"); e("s_cbranch_scc1 L_noq")
    e("v_lshlrev_b32 v12, 2, v1"); e("v_lshlrev_b32 v13, 3, v1")
    e(f"s_lshl_b32 {T0}, s48, 14"); e(f"s_lshr_b32 {T1}, s49, 3"); e(f"s_lshl_b32 {T1}, {T1}, 12"); e(f"s_add_u32 s60, {T0}, {T1}")
    e(f"s_and_b32 {T1}, s49, 7"); e(f"s_lshl_b32 {T1}, {T1}, 9"); e(f"s_add_u32 s60, s60, {T1}")
    lds_wait("v22",0,lambda t: e(f"s_cmp_lt_u32 {t}, 4"))
    for k in range(16): e(f"ds_read_b32 v{144+k}, v12 offset:{L_QP+256*k}")
    e(f"s_add_u32 {T1}, s60, {WS_QS}"); e(f"s_add_u32 {T0}, s60, {WS_QA}")
    e("s_mov_b32 s60, 0x05040100")
    e("s_waitcnt lgkmcnt(0)")
    for stp in (1,2,4,8):
        for k in range(0,16,2*stp): e(f"v_add_f32 v{144+k}, v{144+k}, v{144+k+stp}")
    e("v_mov_b32_dpp v146, v144 quad_perm:[1,0,3,2] row_mask:0xf bank_mask:0xf")
    e("v_mov_b32 v145, s63"); e("v_mov_b32 v147, s63")
    execm("0x55555555","0x55555555")
    if not force_slow: e(f"buffer_store_dwordx4 v[144:147], v13, s[40:43], {T0} offen")
    e(f"buffer_store_dwordx4 v[144:147], v13, s[40:43], {T1} offen sc1")
    execm(1,0)
    e("v_mov_b32 v21, 1")
    e("ds_write_b32 v22, v21 offset:4")
    execall()
    e("L_noq:")
    ST("qpub")
    e("s_barrier")
    if evenW: parity_scc()
    nv=0
    for s_ in range(2):
        for hh in range(2):
            for ee in range(8):
                of=s_*16384+ee*2048+hh*256
                r=64+64*s_+32*hh+4*ee
                throttle(nv); nv+=1
                e(f"buffer_load_dwordx4 v[{r}:{r+3}], v3, s[24:27], s{52+of//4096} offen offset:{of%4096}{nt}")
    ST("Viss")
    e("L_join:")
    e("s_waitcnt lgkmcnt(0)")
    e("s_barrier")
    ST("P")
    e("s_cmp_lt_u32 s3, 4"); e("s_cbranch_scc1 L_vpv")
    if not earlyml:
        e("s_cmp_lg_u32 s3, 4"); e("s_cbranch_scc1 L_noml2")
        e(f"ds_read_b128 v[232:235], v18 offset:{L_MX}")
        e(f"ds_read_b128 v[236:239], v18 offset:{L_LS}")
        e("s_waitcnt lgkmcnt(0)")
        ml_compute(241,242); ml_publish()
        e("L_noml2:")
    e(f"s_lshl_b32 {T0}, s48, 9"); e(f"s_lshl_b32 {T1}, s49, 4"); e(f"s_add_u32 {T0}, {T0}, {T1}")
    e(f"s_and_b32 {T1}, s3, 3"); e(f"s_lshl_b32 {T1}, {T1}, 2"); e(f"s_add_u32 {T0}, {T0}, {T1}"); e(f"s_mul_i32 {T0}, {T0}, 896")
    e("s_mov_b32 exec_hi, 0x00ffffff")
    for n in range(4): e(f"buffer_load_dwordx4 v[{64+4*n}:{67+4*n}], v14, s[36:39], {T0} offen offset:{896*n}{nt}")
    execall()
    e("s_cmp_lg_u32 s3, 6"); e("s_cbranch_scc1 L_nopre")
    e(f"s_lshl_b32 {T0}, s48, 17"); e(f"s_lshl_b32 {T1}, s49, 12"); e(f"s_add_u32 {T0}, {T0}, {T1}"); e(f"s_add_u32 {T0}, {T0}, {WS_OB}")
    e("v_lshlrev_b32 v8, 7, v1")
    e("s_mov_b32 exec_hi, 0")
    e(f"buffer_load_dword v52, v8, s[40:43], {T0} offen sc1")
    execall()
    e("L_nopre:")
    e("s_cmp_lg_u32 s3, 5"); e("s_cbranch_scc1 L_nopre2")
    e(f"s_cmp_ge_u32 s49, {NRED}"); e("s_cbranch_scc1 L_nopre2")
    e(f"s_mul_i32 {T0}, s48, {28*4096}"); e(f"s_lshl_b32 {T1}, s49, 12"); e(f"s_add_u32 {T0}, {T0}, {T1}"); e(f"s_add_u32 {T0}, {T0}, {WS_OC}")
    e("v_lshlrev_b32 v8, 7, v1")
    e("s_mov_b32 exec_hi, 0")
    e(f"buffer_load_dword v52, v8, s[40:43], {T0} offen sc1")
    execall()
    e("L_nopre2:")
    e("s_cmp_lg_u32 s3, 7"); e("s_cbranch_scc1 L_nogp")
    e("v_bfe_u32 v8, v1, 1, 4"); e("v_lshlrev_b32 v25, 7, v8")
    e("v_lshrrev_b32 v9, 5, v1"); e("v_lshl_add_u32 v25, v9, 6, v25")
    e("v_and_b32 v9, 1, v1"); e("v_lshl_add_u32 v25, v9, 5, v25")
    e("v_lshlrev_b32 v26, 4, v8")
    e(f"s_lshl_b32 {T0}, s48, 17"); e(f"s_lshl_b32 {T1}, s49, 12"); e(f"s_add_u32 {T0}, {T0}, {T1}"); e(f"s_add_u32 s60, {T0}, {WS_OB}")
    e(f"s_lshl_b32 {T1}, s48, 1"); e(f"s_lshr_b32 {T0}, s49, 4"); e(f"s_add_u32 {T1}, {T1}, {T0}"); e(f"s_lshl_b32 {T1}, {T1}, 9"); e(f"s_add_u32 s61, {T1}, {WS_ML}")
    e("buffer_load_dwordx4 v[144:147], v26, s[40:43], s61 offen sc1")
    e("buffer_load_dwordx4 v[148:151], v26, s[40:43], s61 offen offset:256 sc1")
    e("v_lshrrev_b32 v27, 5, v1"); e("v_lshlrev_b32 v27, 5, v27"); e("v_lshl_add_u32 v27, v9, 4, v27")
    e("L_nogp:")
    e(f"s_and_b32 {T1}, s3, 3"); e(f"s_mul_i32 {T1}, {T1}, 3584"); e(f"v_add_u32 v20, {T1}, v14")
    e("s_barrier")
    e("s_cmp_eq_u32 s3, 7"); e("s_cbranch_scc1 L_wo7")
    e("s_waitcnt vmcnt(0)")
    e("s_branch L_wost")
    e("L_wo7:")
    def oload():
        e("buffer_load_dwordx4 v[128:131], v25, s[40:43], s60 offen sc1")
        e("buffer_load_dwordx4 v[132:135], v25, s[40:43], s60 offen offset:16 sc1")
        e("buffer_load_dwordx4 v[136:139], v25, s[40:43], s60 offen offset:2048 sc1")
        e("buffer_load_dwordx4 v[140:143], v25, s[40:43], s60 offen offset:2064 sc1")
    oload()
    e("s_waitcnt vmcnt(6)")
    e("L_wost:")
    e("s_mov_b32 exec_hi, 0x00ffffff")
    for n in range(4): e(f"ds_write_b128 v20, v[{64+4*n}:{67+4*n}] offset:{L_WO+896*n}")
    execall()
    e("v_mov_b32 v21, 1")
    e("s_waitcnt lgkmcnt(0)")
    lds_signal("v22",12,"v21")
    e("s_cmp_lg_u32 s3, 7"); e("s_cbranch_scc1 L_nob")
    e(f"s_mov_b32 {SPIN}, {spin_limit}")
    e("s_waitcnt vmcnt(4)")
    e("L_mlchk:")
    e("v_min3_u32 v152, v145, v147, v149"); e("v_max3_u32 v153, v145, v147, v149")
    e("v_min_u32 v152, v152, v151"); e("v_max_u32 v153, v153, v151")
    e(f"v_xor_b32 v152, {TAG}, v152"); e(f"v_xor_b32 v153, {TAG}, v153"); e("v_or_b32 v152, v152, v153")
    e("v_cmp_ne_u32 vcc, 0, v152")
    e("s_cbranch_vccz L_mlok")
    e(f"s_sub_u32 {SPIN}, {SPIN}, 1"); e(f"s_cmp_eq_u32 {SPIN}, 0"); e("s_cbranch_scc1 L_mlok")
    e("buffer_load_dwordx4 v[144:147], v26, s[40:43], s61 offen sc1")
    e("buffer_load_dwordx4 v[148:151], v26, s[40:43], s61 offen offset:256 sc1")
    e("s_waitcnt vmcnt(0)")
    e("s_branch L_mlchk")
    e("L_mlok:")
    def allred(op,regs_,tmps):
        for s_ in (2,4,8):
            for r in regs_: e(f"{op}_dpp v{r}, v{r}, v{r} row_ror:{s_} row_mask:0xf bank_mask:0xf")
        for r,t in zip(regs_,tmps): e(f"v_mov_b32 v{t}, v{r}")
        for r,t in zip(regs_,tmps): e(f"v_permlane16_swap_b32 v{t}, v{r}")
        for r,t in zip(regs_,tmps): e(f"{op} v{r}, v{r}, v{t}")
    e("v_max_f32 v152, v144, v148")
    allred("v_max_f32",[152],[153])
    e("v_sub_f32 v144, v144, v152"); e("v_sub_f32 v148, v148, v152")
    e("v_exp_f32 v144, v144"); e("v_exp_f32 v148, v148")
    e("v_mul_f32 v154, v144, v146"); e("v_fmac_f32 v154, v148, v150")
    allred("v_add_f32",[154],[155])
    e("v_rcp_f32 v154, v154")
    e("v_mul_f32 v144, v144, v154"); e("v_mul_f32 v148, v148, v154")
    e(f"s_mov_b32 {SPIN}, {spin_limit}")
    if stamp: e("s_mov_b32 s63, 0")
    e("L_bchk:")
    e("s_waitcnt vmcnt(0)")
    if stamp: e("s_add_u32 s63, s63, 1")
    e("v_min3_u32 v152, v129, v131, v133"); e("v_max3_u32 v153, v129, v131, v133")
    e("v_min3_u32 v152, v152, v135, v137"); e("v_max3_u32 v153, v153, v135, v137")
    e("v_min3_u32 v152, v152, v139, v141"); e("v_max3_u32 v153, v153, v139, v141")
    e("v_min_u32 v152, v152, v143"); e("v_max_u32 v153, v153, v143")
    for k in range(4): e(f"v_mul_f32 v{156+k}, v144, v{128+2*k}")
    e(f"v_xor_b32 v152, {TAG}, v152"); e(f"v_xor_b32 v153, {TAG}, v153"); e("v_or_b32 v152, v152, v153")
    for k in range(4): e(f"v_fmac_f32 v{156+k}, v148, v{136+2*k}")
    e("v_cmp_ne_u32 vcc, 0, v152")
    e("s_cbranch_vccz L_bok")
    e(f"s_sub_u32 {SPIN}, {SPIN}, 1"); e(f"s_cmp_eq_u32 {SPIN}, 0"); e("s_cbranch_scc1 L_bok")
    oload()
    e("s_branch L_bchk")
    e("L_bok:")
    ST("Bok")
    allred("v_add_f32",[156,157,158,159],[160,161,162,163])
    e("v_cvt_pk_bf16_f32 v160, v156, v157"); e("v_cvt_pk_bf16_f32 v161, v158, v159")
    e("v_lshlrev_b32 v156, 16, v160"); e("v_and_b32 v157, 0xffff0000, v160")
    e("v_lshlrev_b32 v158, 16, v161"); e("v_and_b32 v159, 0xffff0000, v161")
    execm(3,3)
    e(f"ds_write_b128 v27, v[156:159] offset:{L_OV}")
    execall()
    e("s_branch L_nob")
    e("L_vpv:")
    e("v_lshlrev_b32 v18, 4, v16")
    e(f"ds_read_b128 v[232:235], v18 offset:{L_MX}")
    e(f"ds_read_b128 v[236:239], v18 offset:{L_LS}")
    e("ds_read_b32 v240, v22 offset:8")
    e(f"s_lshl_b32 {T1}, s3, 11"); e("v_lshlrev_b32 v20, 4, v1"); e(f"v_add_u32 v20, {T1}, v20")
    e(f"ds_read_b128 v[192:195], v20 offset:{L_P}")
    e(f"ds_read_b128 v[196:199], v20 offset:{L_P+1024}")
    e("s_waitcnt lgkmcnt(0)")
    e("v_readfirstlane_b32 s62, v240"); e("s_lshr_b32 s62, s62, 8")
    ml_compute(241,242)
    e("v_lshlrev_b32 v23, 16, v16")
    e("v_lshl_add_u32 v23, v7, 13, v23")
    e("v_bfe_u32 v8, v1, 3, 1"); e("v_lshl_add_u32 v23, v8, 5, v23")
    e("v_and_b32 v8, 2, v1"); e("v_lshl_add_u32 v23, v8, 3, v23")
    e("v_and_b32 v8, 1, v1"); e("v_lshl_add_u32 v23, v8, 6, v23")
    e("v_lshlrev_b32 v21, 2, v1")
    e(f"s_lshl_b32 {T1}, s3, 9"); e(f"v_add_u32 v24, {T1}, v21")
    e(f"s_lshl_b32 {T1}, s3, 11"); e(f"v_add_u32 v25, {T1}, v21")
    def mask(s_):
        for t in range(8):
            for u in range(4):
                e(f"v_cndmask_b32 v{200+4*t+u}, 0, v{192+4*s_+u}, s[{64+2*t}:{65+2*t}]")
    def pv(s_,hh,first):
        acc=244+4*hh
        base=64+64*s_+32*hh
        for c in range(4):
            tb=(36 if c%2==0 else 44)
            for u in range(4):
                e(f"v_perm_b32 v{tb+u}, v{base+4*(2*u+1)+c}, v{base+4*(2*u)+c}, s60")
            for u in range(4):
                e(f"v_perm_b32 v{tb+4+u}, v{base+4*(2*u+1)+c}, v{base+4*(2*u)+c}, s61")
            for par in range(2):
                t=2*c+par
                C="0" if (first and c==0 and par==0) else f"v[{acc}:{acc+3}]"
                e(f"v_mfma_f32_16x16x32_bf16 v[{acc}:{acc+3}], v[{tb+4*par}:{tb+4*par+3}], v[{200+4*t}:{203+4*t}], {C}")
    mask(0)
    e("s_waitcnt vmcnt(24)"); pv(0,0,True)
    e("s_waitcnt vmcnt(16)"); pv(0,1,True)
    mask(1)
    e("s_waitcnt vmcnt(8)"); pv(1,0,False)
    for r in range(4): e(f"ds_write_b32 v25, v{244+r} offset:{L_OR+r*256}")
    e(f"s_lshl_b32 {T0}, s48, 17"); e(f"s_lshl_b32 {T1}, s49, 7"); e(f"s_add_u32 {T0}, {T0}, {T1}"); e(f"s_add_u32 {T0}, {T0}, {WS_OB}")
    e(f"s_bfe_u32 {T1}, s3, 0x10001"); e(f"s_lshl_b32 {T1}, {T1}, 15"); e(f"s_add_u32 {T0}, {T0}, {T1}")
    e(f"s_and_b32 {T1}, s3, 1"); e(f"s_lshl_b32 {T1}, {T1}, 12"); e(f"s_add_u32 {T0}, {T0}, {T1}")
    e(f"v_mov_b32 v197, {TAG}"); e(f"v_mov_b32 v199, {TAG}")
    e("s_waitcnt vmcnt(0)")
    ST("V1done")
    pv(1,1,False)
    e("s_mov_b32 s64, 0x55555555"); e("s_mov_b32 s65, 0x55555555")
    for r in range(4): e(f"ds_write_b32 v25, v{248+r} offset:{L_OR+1024+r*256}")
    e("s_waitcnt lgkmcnt(0)")
    e("s_barrier")
    for k in range(4): e(f"ds_read_b32 v{192+k}, v24 offset:{L_OR+2048*k}")
    for k in range(4): e(f"ds_read_b32 v{200+k}, v24 offset:{L_OR+2048*k+256}")
    e("s_waitcnt lgkmcnt(0)")
    e("v_mul_f32 v252, v192, v232"); e("v_mul_f32 v254, v200, v232")
    for k in range(1,4): e(f"v_fmac_f32 v252, v{192+k}, v{232+k}"); e(f"v_fmac_f32 v254, v{200+k}, v{232+k}")
    e("v_mov_b32_dpp v192, v252 quad_perm:[1,0,3,2] row_mask:0xf bank_mask:0xf")
    e("v_mov_b32_dpp v193, v254 quad_perm:[1,0,3,2] row_mask:0xf bank_mask:0xf")
    e("v_cndmask_b32 v196, v193, v252, s[64:65]")
    e("v_cndmask_b32 v198, v254, v192, s[64:65]")
    store2(f"buffer_store_dwordx4 v[196:199], v23, s[40:43], {T0} offen")
    ST("pub")
    e("L_nob:")
    e("v_lshrrev_b32 v20, 5, v1"); e("v_mul_u32_u24 v20, 7168, v20"); e("v_and_b32 v8, 31, v1"); e("v_lshl_add_u32 v20, v8, 2, v20")
    e(f"s_lshl_b32 {T1}, s3, 7"); e(f"v_add_u32 v20, {T1}, v20")
    e("s_cmp_eq_u32 s3, 7"); e("s_cbranch_scc1 L_nowr")
    lds_wait("v22",12,lambda t: e(f"s_cmp_lt_u32 {t}, 4"))
    for r8 in range(8): e(f"ds_read_b32 v{28+r8}, v20 offset:{L_WO+896*r8}")
    e("v_lshrrev_b32 v27, 3, v1"); e("v_lshlrev_b32 v27, 12, v27")
    e("v_and_b32 v9, 7, v1"); e("v_lshl_add_u32 v27, v9, 4, v27")
    e(f"s_mul_i32 {T0}, s48, {28*4096}"); e(f"s_lshl_b32 {T1}, s3, 14"); e(f"s_add_u32 {T0}, {T0}, {T1}"); e(f"s_lshl_b32 {T1}, s49, 7"); e(f"s_add_u32 {T0}, {T0}, {T1}"); e(f"s_add_u32 {T0}, {T0}, {WS_OC}")
    e(f"v_mov_b32 v105, {TAG}"); e(f"v_mov_b32 v107, {TAG}")
    e("s_waitcnt lgkmcnt(0)")
    for r8 in range(8):
        e(f"v_lshlrev_b32 v{36+2*r8}, 16, v{28+r8}"); e(f"v_and_b32 v{37+2*r8}, 0xffff0000, v{28+r8}")
    e("L_nowr:")
    e("v_lshrrev_b32 v8, 5, v1"); e("v_lshlrev_b32 v8, 5, v8")
    e(f"s_mul_i32 s60, s48, {28*4096}"); e(f"s_lshl_b32 {T1}, s49, 12"); e(f"s_add_u32 s60, s60, {T1}"); e(f"s_add_u32 s60, s60, {WS_OC}")
    e("v_lshlrev_b32 v14, 4, v1")
    e("s_waitcnt lgkmcnt(0)")
    e("s_barrier")
    ST("B5")
    e("s_cmp_eq_u32 s3, 7"); e("s_cbranch_scc1 L_stageC")
    e(f"ds_read_b128 v[96:99], v8 offset:{L_OV}")
    e(f"ds_read_b128 v[100:103], v8 offset:{L_OV+16}")
    e("s_waitcnt lgkmcnt(1)")
    e("v_mul_f32 v104, v96, v36"); e("v_mul_f32 v106, v96, v37")
    e("v_mul_f32 v108, v97, v38"); e("v_mul_f32 v109, v97, v39")
    e("v_fmac_f32 v104, v98, v40"); e("v_fmac_f32 v106, v98, v41")
    e("v_fmac_f32 v108, v99, v42"); e("v_fmac_f32 v109, v99, v43")
    e("s_waitcnt lgkmcnt(0)")
    e("v_fmac_f32 v104, v100, v44"); e("v_fmac_f32 v106, v100, v45")
    e("v_fmac_f32 v108, v101, v46"); e("v_fmac_f32 v109, v101, v47")
    e("v_fmac_f32 v104, v102, v48"); e("v_fmac_f32 v106, v102, v49")
    e("v_fmac_f32 v108, v103, v50"); e("v_fmac_f32 v109, v103, v51")
    e("v_add_f32 v104, v104, v108"); e("v_add_f32 v106, v106, v109")
    e("v_mov_b32 v108, v104"); e("v_mov_b32 v109, v106")
    e("v_permlane32_swap_b32 v108, v104"); e("v_permlane32_swap_b32 v109, v106")
    e("v_add_f32 v104, v104, v108"); e("v_add_f32 v106, v106, v109")
    e("s_mov_b32 exec_hi, 0")
    store2(f"buffer_store_dwordx4 v[104:107], v27, s[40:43], {T0} offen")
    ST("Cpub")
    e("s_branch L_end")
    e("L_stageC:")
    e(f"s_cmp_ge_u32 s49, {NRED}"); e("s_cbranch_scc1 L_end")
    e(f"s_mov_b32 {SPIN}, {spin_limit}")
    e(f"s_lshl_b32 s61, s49, 10"); e(f"s_add_u32 s61, s61, {WS_OD}")
    e(f"s_lshl_b32 {T1}, s48, 7"); e(f"s_add_u32 {T1}, {T1}, s61")
    e(f"v_mov_b32 v105, {TAG}"); e(f"v_mov_b32 v107, {TAG}")
    e("L_cpoll:")
    for n in range(4): e(f"buffer_load_dwordx4 v[{128+4*n}:{131+4*n}], v14, s[40:43], s60 offen offset:{1024*n} sc1")
    e("s_waitcnt vmcnt(0)")
    e("v_min3_u32 v96, v129, v131, v133"); e("v_max3_u32 v97, v129, v131, v133")
    e("v_add_f32 v128, v128, v132"); e("v_add_f32 v130, v130, v134")
    e("v_min3_u32 v96, v96, v135, v137"); e("v_max3_u32 v97, v97, v135, v137")
    e("v_add_f32 v136, v136, v140"); e("v_add_f32 v138, v138, v142")
    e("v_min3_u32 v96, v96, v139, v141"); e("v_max3_u32 v97, v97, v139, v141")
    e("v_add_f32 v104, v128, v136"); e("v_add_f32 v106, v130, v138")
    e("v_min_u32 v96, v96, v143"); e("v_max_u32 v97, v97, v143")
    e(f"v_xor_b32 v96, {TAG}, v96"); e(f"v_xor_b32 v97, {TAG}, v97"); e("v_or_b32 v96, v96, v97")
    e("v_add_f32_dpp v104, v104, v104 row_ror:8 row_mask:0xf bank_mask:0xf")
    e("v_add_f32_dpp v106, v106, v106 row_ror:8 row_mask:0xf bank_mask:0xf")
    e("v_cmp_ne_u32 vcc, 0, v96")
    e("s_cbranch_vccz L_cok")
    e(f"s_sub_u32 {SPIN}, {SPIN}, 1"); e(f"s_cmp_lg_u32 {SPIN}, 0"); e("s_cbranch_scc1 L_cpoll")
    e("L_cok:")
    ST("Cok")
    def red1632(a,b):
        for sw in ("16","32"):
            e(f"v_mov_b32 v96, v{a}"); e(f"v_mov_b32 v97, v{b}")
            e(f"v_permlane{sw}_swap_b32 v96, v{a}"); e(f"v_permlane{sw}_swap_b32 v97, v{b}")
            e(f"v_add_f32 v{a}, v{a}, v96"); e(f"v_add_f32 v{b}, v{b}, v97")
    red1632(104,106)
    execm("0xff",0)
    e(f"buffer_store_dwordx4 v[104:107], v14, s[40:43], {T1} offen sc1")
    execall()
    e(f"s_and_b32 {T1}, s49, 7"); e(f"s_cmp_lg_u32 {T1}, s48"); e("s_cbranch_scc1 L_end")
    e(f"s_mov_b32 {SPIN}, {spin_limit}")
    e("L_dpoll:")
    e("buffer_load_dwordx4 v[128:131], v14, s[40:43], s61 offen sc1")
    e("s_waitcnt vmcnt(0)")
    e(f"v_xor_b32 v96, {TAG}, v129"); e(f"v_xor_b32 v97, {TAG}, v131"); e("v_or_b32 v96, v96, v97")
    e("v_add_f32_dpp v128, v128, v128 row_ror:8 row_mask:0xf bank_mask:0xf")
    e("v_add_f32_dpp v130, v130, v130 row_ror:8 row_mask:0xf bank_mask:0xf")
    e("v_cmp_ne_u32 vcc, 0, v96")
    e("s_cbranch_vccz L_dok")
    e(f"s_sub_u32 {SPIN}, {SPIN}, 1"); e(f"s_cmp_lg_u32 {SPIN}, 0"); e("s_cbranch_scc1 L_dpoll")
    e("L_dok:")
    ST("Dok")
    red1632(128,130)
    e("v_cvt_pk_bf16_f32 v98, v128, v130")
    e(f"s_lshl_b32 {T1}, s49, 5")
    e("v_lshlrev_b32 v99, 2, v1")
    execm("0xff",0)
    e(f"buffer_store_dword v98, v99, s[44:47], {T1} offen")
    e("s_cmp_lg_u32 s49, 0"); e("s_cbranch_scc1 L_end")
    e("s_mov_b32 exec_lo, 1")
    e("v_mov_b32 v100, s50"); e("v_mov_b32 v101, 0")
    e("buffer_store_dword v100, v101, s[40:43], 0 offen sc1")
    e("L_end:")
    if stamp:
        ST("end")
        n=nst[0]
        execall()
        e("s_waitcnt lgkmcnt(0)")
        e(f"s_lshl_b32 {T0}, s2, 3"); e(f"s_add_u32 {T0}, {T0}, s3"); e(f"s_lshl_b32 {T0}, {T0}, 6"); e(f"s_add_u32 {T0}, {T0}, {WS_STAMP}")
        for i in range(16):
            e(f"v_mov_b32 v{96+i}, s{SREG(i)}" if i<n else (f"v_mov_b32 v{96+i}, s63" if i==15 else f"v_mov_b32 v{96+i}, 0"))
        e("v_mov_b32 v112, 0")
        execm(1,0)
        for q in range(4):
            e(f"buffer_store_dwordx4 v[{96+4*q}:{99+4*q}], v112, s[40:43], {T0} offen offset:{16*q}")
    e("L_done:"); e("s_endpgm")
    e('.section .rodata,"a"'); e(".p2align 6"); e(f".amdhsa_kernel {NAME}")
    e("  .amdhsa_next_free_vgpr 256"); e(f"  .amdhsa_next_free_sgpr 102"); e("  .amdhsa_accum_offset 256")
    e("  .amdhsa_group_segment_fixed_size 0"); e("  .amdhsa_kernarg_size 64"); e("  .amdhsa_user_sgpr_count 2")
    e("  .amdhsa_user_sgpr_kernarg_segment_ptr 1"); e("  .amdhsa_system_sgpr_workgroup_id_x 1"); e(".end_amdhsa_kernel")
    if stamp: open("stampnames.txt","w").write(",".join(names))
    return "\n".join(pad(o,verbose=True))+"\n"

STAMPS=["entry","Kiss","qrdy","soft","qpub","Viss","P","V1done","pub","Bok","B5","Cpub","Cok","Dok","end"]
if __name__=="__main__":
    from build import build
    def mk(nm,**kw):
        open(nm+".s","w").write(gen(**kw)); build(nm+".s",nm+".co")
    mk("k11"); mk("k11slow",force_slow=True); mk("k11s",stamp=STAMPS)
```

```python
import sys, struct
from asmlib import pad

NAME="standalone__gqa_block_cached__decode_kernel"
def f32hex(x): return "0x%08x"%struct.unpack("<I",struct.pack("<f",x))[0]

WS_EPOCH=0
WS_ML=0x6000
WS_QA=0x40000
WS_QS=0x60000
WS_OB=0x100000
WS_OC=0x200000
WS_OD=0x300000
WS_STAMP=0x400000
WS_SIZE=0x800000
NRED=28
L_CNT=1024
L_MX=1088
L_LS=1152
L_OV=1216
L_RC=1280
L_P=2048
L_OR=10240
L_QB=18432
L_WO=19456
L_QP=19456+14336
L_TOTAL=19456+14336+4096

def SREG(i): return 80+2*i if i<10 else 4+2*(i-10)
T0,T1="s0","s1"
SPIN="s100"; CC="s101"
TAG="s51"

def gen(stamp=None, nt=" nt", spin_limit=200000, force_slow=False, k0=5, k1=12, evenW=0, earlyml=True, cspec=True, kwin=10, vwin=0, pipe=True):
    o=[]; e=o.append
    nst=[0]; names=[]
    def ST(name):
        if stamp and (name in stamp):
            if name in names: i=names.index(name)
            else:
                i=nst[0]; nst[0]+=1; names.append(name)
            r=SREG(i); e(f"s_memrealtime s[{r}:{r+1}]")
    def srd(d,lo,size):
        e(f"s_mov_b32 s{d}, s{lo}"); e(f"s_mov_b32 s{d+1}, s{lo+1}"); e(f"s_mov_b32 s{d+2}, {size}"); e(f"s_mov_b32 s{d+3}, 0x20000")
    def execm(lo,hi):
        e(f"s_mov_b32 exec_lo, {lo}"); e(f"s_mov_b32 exec_hi, {hi}")
    def execall(): e("s_mov_b64 exec, -1")
    lab=[0]
    def lds_wait(addr_v, off, cond, tmp_v="v21", tmp_s="s0"):
        lab[0]+=1; L=f"L_w{lab[0]}"
        e(f"s_mov_b32 {SPIN}, {spin_limit}")
        e(f"{L}:")
        e(f"ds_read_b32 {tmp_v}, {addr_v} offset:{off}")
        e("s_waitcnt lgkmcnt(0)")
        e(f"v_readfirstlane_b32 {tmp_s}, {tmp_v}")
        e(f"s_sub_u32 {SPIN}, {SPIN}, 1"); e(f"s_cmp_eq_u32 {SPIN}, 0"); e(f"s_cbranch_scc1 {L}x")
        cond(tmp_s)
        e(f"s_cbranch_scc1 {L}")
        e(f"{L}x:")
    def lds_signal(addr_v, off, val_v):
        execm(1,0); e(f"ds_add_u32 {addr_v}, {val_v} offset:{off}"); execall()
    thr=[0]
    def parity_scc():
        e("s_getreg_b32 s0, hwreg(HW_REG_XCC_ID)"); e("s_and_b32 s0, s0, 1"); e("s_cmp_eq_u32 s0, 0")
    def throttle(n_issued):
        if evenW and n_issued>=evenW:
            thr[0]+=1
            e(f"s_cbranch_scc0 L_thr{thr[0]}"); e(f"s_waitcnt vmcnt({evenW-1})"); e(f"L_thr{thr[0]}:")
    def store2(ins_plain):
        lab[0]+=1; L=f"L_s{lab[0]}"
        e("s_cmp_lg_u32 s62, 0"); e(f"s_cbranch_scc1 {L}a")
        e(ins_plain); e(f"s_branch {L}b")
        e(f"{L}a:"); e(ins_plain+" sc1"); e(f"{L}b:")

    hdr=open("standalone__gqa_block_cached__decode.s.ref").read().split("\n")
    for l in hdr:
        if l.startswith("; Kernarg") or l.startswith(";   offset"): e(l)
    e(f"; @launch grid=(256,1,1) block=(512,1,1) lds={L_TOTAL}")
    e('.amdgcn_target "amdgcn-amd-amdhsa--gfx950"')
    e(".text"); e(f".globl {NAME}"); e(".p2align 8"); e(f".type {NAME},@function"); e(f"{NAME}:")
    ST("entry")
    e("s_cmp_ge_u32 s2, 256"); e("s_cbranch_scc1 L_done")
    e("s_load_dwordx16 s[4:19], s[0:1], 0")
    e("v_and_b32 v1, 63, v0")
    e("v_lshrrev_b32 v2, 6, v0")
    e("s_and_b32 s48, s2, 7")
    e("s_lshr_b32 s49, s2, 3")
    e("v_readfirstlane_b32 s3, v2")
    e("v_lshrrev_b32 v7, 4, v1")
    e("v_and_b32 v10, 3, v1")
    e("v_bfe_u32 v16, v1, 2, 1")
    e("s_lshl_b32 s52, s48, 22"); e(f"s_lshl_b32 {T0}, s49, 17"); e(f"s_add_u32 s52, s52, {T0}")
    e(f"s_and_b32 {T0}, s3, 3"); e(f"s_lshl_b32 {T0}, {T0}, 15"); e(f"s_add_u32 s52, s52, {T0}")
    for i in range(1,8): e(f"s_add_u32 s{52+i}, s52, {4096*i}")
    e(f"v_mov_b32 v22, {L_CNT}")
    e("v_lshlrev_b32 v14, 4, v1")
    for i in range(24,28): e(f"v_mov_b32 v{i}, 0")
    e("s_cmp_lt_u32 s3, 4"); e("s_cbranch_scc1 L_vwave")
    def common_consts():
        e("s_getreg_b32 s62, hwreg(HW_REG_XCC_ID)"); e("s_and_b32 s62, s62, 7")
        srd(36,12,3670016); srd(40,18,WS_SIZE); srd(44,14,896)
        e(f"s_mov_b32 {CC}, {f32hex(1.4426950408889634/16)}")
    def tags():
        e("s_add_u32 s50, s50, 1"); e(f"s_lshl_b32 {TAG}, s50, 3"); e(f"s_or_b32 s63, {TAG}, s62")
    e("v_lshlrev_b32 v2, 6, v7")
    e("v_bfe_u32 v8, v1, 2, 2")
    e("v_lshl_add_u32 v2, v8, 9, v2")
    e("v_lshl_add_u32 v2, v10, 4, v2")
    e("s_waitcnt lgkmcnt(0)")
    srd(20,6,0x2000000)
    def kload(n):
        of=(n//2)*2048+(n%2)*256
        e(f"buffer_load_dwordx4 v[{64+4*n}:{67+4*n}], v2, s[20:23], s{52+of//4096} offen offset:{of%4096}{nt}")
    for n in range(k0): kload(n)
    e("s_barrier")
    if kwin:
        for n in range(k0,kwin): kload(n)
        e("s_load_dword s50, s[18:19], 0")
        common_consts()
        for n in range(kwin,32):
            e(f"s_waitcnt vmcnt({kwin-1})"); kload(n)
        e("s_waitcnt lgkmcnt(0)")
    else:
        for n in range(k0,k1): kload(n)
        e("s_load_dword s50, s[18:19], 0")
        common_consts()
        lds_wait("v22",4,lambda t: e(f"s_cmp_eq_u32 {t}, 0"))
        if evenW: parity_scc()
        for n in range(k1,32):
            throttle(n); kload(n)
    tags()
    e(f"s_lshl_b32 {T0}, s48, 14"); e(f"s_and_b32 {T1}, s3, 3"); e(f"s_lshl_b32 {T1}, {T1}, 10"); e(f"s_add_u32 {T0}, {T0}, {T1}"); e(f"s_add_u32 s98, {T0}, {WS_QA}" if not stamp else f"s_add_u32 s47, {T0}, {WS_QA}")
    GB="s98" if not stamp else "s47"
    e("v_add_u32 v15, 4096, v14"); e("v_add_u32 v17, 0x2000, v14"); e("v_add_u32 v18, 0x3000, v14")
    def gload():
        for p_,va in enumerate(("v14","v15","v17","v18")):
            e(f"buffer_load_dwordx4 v[{192+4*p_}:{195+4*p_}], {va}, s[40:43], {GB} offen sc1")
    gload()
    ST("Kiss")
    e("s_barrier")
    e(f"s_mov_b32 {SPIN}, {spin_limit}")
    e("s_waitcnt vmcnt(0)")
    e("L_qchk:")
    for i in range(8): e(f"v_xor_b32 v{208+i}, s63, v{193+2*i}")
    e("v_or3_b32 v208, v208, v209, v210"); e("v_or3_b32 v211, v211, v212, v213"); e("v_or3_b32 v208, v208, v214, v215"); e("v_or_b32 v208, v208, v211")
    e("v_cmp_le_u32 vcc, 8, v208")
    e("s_cbranch_vccz L_qok")
    e(f"s_sub_u32 {SPIN}, {SPIN}, 1"); e(f"s_cmp_eq_u32 {SPIN}, 0"); e("s_cbranch_scc1 L_qok")
    e(f"s_xor_b32 {GB}, {GB}, {WS_QA^WS_QS}")
    e("s_setprio 3")
    gload()
    e("s_setprio 0")
    e("s_waitcnt vmcnt(0)")
    e("s_branch L_qchk")
    e("L_qok:")
    if stamp: e(f"s_sub_u32 s63, {spin_limit}, {SPIN}"); e("s_mov_b32 s47, 0x20000")
    e("v_cmp_ne_u32 vcc, 0, v208")
    e("v_add_f32 v192, v192, v196"); e("v_add_f32 v194, v194, v198"); e("v_add_f32 v200, v200, v204"); e("v_add_f32 v202, v202, v206")
    e("v_add_f32 v192, v192, v200"); e("v_add_f32 v194, v194, v202")
    e("s_cmp_lg_u64 vcc, 0"); e("s_cselect_b32 s1, 0x101, 1")
    if force_slow: e("s_mov_b32 s1, 0x101")
    e("v_cvt_pk_bf16_f32 v192, v192, v194")
    e("s_and_b32 s0, s3, 3"); e("s_lshl_b32 s0, s0, 8")
    e("v_lshlrev_b32 v15, 2, v1"); e("v_add_u32 v15, s0, v15")
    e(f"ds_write_b32 v15, v192 offset:{L_QB}")
    e("v_mov_b32 v21, s1")
    e("v_lshlrev_b32 v17, 9, v16"); e("v_lshl_add_u32 v17, v7, 6, v17"); e("v_lshl_add_u32 v17, v10, 4, v17")
    e("s_waitcnt lgkmcnt(0)")
    lds_signal("v22",8,"v21")
    def c_q(t): e(f"s_and_b32 s1, {t}, 0xff"); e("s_cmp_lt_u32 s1, 4")
    lds_wait("v22",8,c_q,tmp_s="s62")
    e("s_lshr_b32 s62, s62, 8")
    e(f"ds_read_b128 v[224:227], v17 offset:{L_QB}")
    e(f"ds_read_b128 v[228:231], v17 offset:{L_QB+256}")
    e("s_waitcnt lgkmcnt(0)")
    ST("qrdy")
    for bt in range(2):
        for n in range(8):
            t=8*bt+n
            e(f"v_mfma_f32_16x16x32_bf16 v[{192+4*n}:{195+4*n}], v[{64+8*t}:{67+8*t}], v[224:227], 0")
        for n in range(8):
            t=8*bt+n
            e(f"v_mfma_f32_16x16x32_bf16 v[{192+4*n}:{195+4*n}], v[{68+8*t}:{71+8*t}], v[228:231], v[{192+4*n}:{195+4*n}]")
        for n in range(8):
            e(f"v_mov_b32_dpp v{232+8*bt+n}, v{192+4*n} quad_perm:[0,0,0,0] row_mask:0xf bank_mask:0xf")
        for r in (1,2,3):
            for n in range(8):
                e(f"v_add_f32_dpp v{232+8*bt+n}, v{192+4*n+r}, v{232+8*bt+n} quad_perm:[{r},{r},{r},{r}] row_mask:0xf bank_mask:0xf")
    e("v_max3_f32 v248, v232, v233, v234")
    for k in range(235,247,2): e(f"v_max3_f32 v248, v248, v{k}, v{k+1}")
    e("v_max_f32 v248, v248, v247")
    e("v_mov_b32 v249, v248"); e("v_permlane16_swap_b32 v249, v248"); e("v_max_f32 v248, v248, v249")
    e("v_mov_b32 v249, v248"); e("v_permlane32_swap_b32 v249, v248"); e("v_max_f32 v248, v248, v249")
    e(f"v_mul_f32 v248, {CC}, v248")
    for n in range(16): e(f"v_fma_f32 v{232+n}, v{232+n}, {CC}, -v248")
    for n in range(16): e(f"v_exp_f32 v{232+n}, v{232+n}")
    for u in range(8): e(f"v_cvt_pk_bf16_f32 v{192+u}, v{232+2*u}, v{233+2*u}")
    for u in range(4): e(f"v_mov_b32 v{200+u}, 0x3f803f80")
    e("v_mfma_f32_16x16x32_bf16 v[204:207], v[200:203], v[192:195], 0")
    e("v_mfma_f32_16x16x32_bf16 v[204:207], v[200:203], v[196:199], v[204:207]")
    e(f"s_and_b32 {T0}, s3, 3"); e(f"s_lshl_b32 {T1}, {T0}, 11")
    e(f"v_add_u32 v20, {T1}, v14")
    e(f"ds_write_b128 v20, v[192:195] offset:{L_P}")
    e(f"ds_write_b128 v20, v[196:199] offset:{L_P+1024}")
    e(f"s_lshl_b32 {T1}, {T0}, 2")
    e("v_lshlrev_b32 v18, 4, v16"); e(f"v_add_u32 v19, {T1}, v18")
    execm("0x11",0)
    e(f"ds_write_b32 v19, v248 offset:{L_MX}")
    e(f"ds_write_b32 v19, v204 offset:{L_LS}")
    execall()
    def ml_compute(mreg,lreg):
        e(f"v_max3_f32 v{mreg}, v232, v233, v234"); e(f"v_max_f32 v{mreg}, v{mreg}, v235")
        for k in range(4): e(f"v_sub_f32 v{232+k}, v{232+k}, v{mreg}")
        for k in range(4): e(f"v_exp_f32 v{232+k}, v{232+k}")
        e(f"v_mul_f32 v{lreg}, v232, v236")
        for k in range(1,4): e(f"v_fmac_f32 v{lreg}, v{232+k}, v{236+k}")
    def ml_publish():
        e(f"v_mov_b32 v192, v241"); e(f"v_mov_b32 v193, {TAG}"); e("v_mov_b32 v194, v242"); e(f"v_mov_b32 v195, {TAG}")
        e("v_lshlrev_b32 v8, 9, v16")
        e(f"s_lshl_b32 {T1}, s48, 10"); e(f"s_lshl_b32 {T0}, s49, 4"); e(f"s_add_u32 {T1}, {T1}, {T0}"); e(f"s_add_u32 {T1}, {T1}, {WS_ML}")
        execm("0x11",0)
        store2(f"buffer_store_dwordx4 v[192:195], v8, s[40:43], {T1} offen")
        execall()
    if earlyml:
        e("v_mov_b32 v21, 1")
        e("s_waitcnt lgkmcnt(0)")
        lds_signal("v22",16,"v21")
        e("s_cmp_lg_u32 s3, 4"); e("s_cbranch_scc1 L_noeml")
        lds_wait("v22",16,lambda t: e(f"s_cmp_lt_u32 {t}, 4"))
        e(f"ds_read_b128 v[232:235], v18 offset:{L_MX}")
        e(f"ds_read_b128 v[236:239], v18 offset:{L_LS}")
        e("s_waitcnt lgkmcnt(0)")
        ml_compute(241,242)
        ml_publish()
        e("L_noeml:")
    ST("soft")
    e("s_branch L_join")
    e("L_vwave:")
    e(f"s_lshr_b32 {T0}, s49, 3"); e(f"s_mul_i32 {T0}, {T0}, 112"); e(f"s_mul_i32 {T1}, s3, 28"); e(f"s_add_u32 {T0}, {T0}, {T1}")
    e(f"s_lshl_b32 {T1}, {T0}, 1"); e("v_lshlrev_b32 v6, 2, v1"); e(f"v_add_u32 v6, {T1}, v6")
    e("v_mov_b32 v9, 0x10000000"); e("v_cmp_gt_u32 vcc, 14, v1"); e("v_cndmask_b32 v6, v9, v6, vcc")
    e("v_lshrrev_b32 v8, 3, v1")
    e(f"v_add_u32 v4, {T0}, v8")
    e(f"s_lshl_b32 {T0}, s48, 10"); e(f"s_and_b32 {T1}, s49, 7"); e(f"s_lshl_b32 {T1}, {T1}, 7"); e(f"s_add_u32 {T0}, {T0}, {T1}")
    e("v_and_b32 v11, 7, v1"); e("v_lshlrev_b32 v12, 4, v11")
    e("v_lshl_add_u32 v4, v4, 13, v12"); e(f"v_add_u32 v4, {T0}, v4")
    e("v_add_u32 v13, 0x30000, v4"); e("v_cmp_gt_u32 vcc, 32, v1"); e("v_cndmask_b32 v13, v9, v13, vcc")
    e("v_add_u32 v5, 0x10000, v4"); e("v_add_u32 v15, 0x20000, v4")
    e("ds_write_b128 v22, v[24:27]"); e("ds_write_b128 v22, v[24:27] offset:16")
    e("s_waitcnt lgkmcnt(0)")
    srd(28,10,3670016); srd(32,4,896)
    e("buffer_load_dword v128, v6, s[32:35], 0 offen")
    e(f"buffer_load_dwordx4 v[132:135], v4, s[28:31], 0 offen{nt}")
    e(f"buffer_load_dwordx4 v[136:139], v5, s[28:31], 0 offen{nt}")
    e(f"buffer_load_dwordx4 v[140:143], v15, s[28:31], 0 offen{nt}")
    e(f"buffer_load_dwordx4 v[144:147], v13, s[28:31], 0 offen{nt}")
    e("s_barrier")
    e("s_load_dword s50, s[18:19], 0")
    common_consts()
    srd(24,8,0x2000000)
    e("s_mov_b32 s60, 0x05040100"); e("s_mov_b32 s61, 0x07060302")
    for t in range(8):
        p=((1<<t)|(1<<(4+t))) if t<4 else ((1<<(8+t-4))|(1<<(12+t-4)))
        p=p*0x00010001
        e(f"s_mov_b32 s{64+2*t}, {hex(p)}"); e(f"s_mov_b32 s{65+2*t}, {hex(p)}")
    e("v_and_b32 v9, 15, v1"); e("v_lshlrev_b32 v3, 9, v7"); e("v_lshl_add_u32 v3, v9, 4, v3")
    e("v_and_b32 v12, 1, v8"); e("v_lshlrev_b32 v12, 4, v12"); e("v_sub_u32 v12, 16, v12")
    e("v_lshlrev_b32 v8, 2, v7")
    e("v_lshlrev_b32 v11, 5, v11"); e("v_lshl_add_u32 v11, v7, 8, v11"); e(f"s_lshl_b32 {T0}, s3, 10"); e(f"v_add_u32 v11, {T0}, v11")
    e("s_waitcnt vmcnt(4)")
    for n in range(4):
        if n: e(f"v_add_u32 v9, {16*n}, v8")
        e(f"ds_bpermute_b32 v{148+n}, {'v9' if n else 'v8'}, v128")
    e("s_waitcnt lgkmcnt(0)")
    tags()
    for n in range(4):
        e(f"v_lshlrev_b32 v{148+n}, v12, v{148+n}"); e(f"v_and_b32 v{148+n}, 0xffff0000, v{148+n}")
    for n in range(4):
        e(f"s_waitcnt vmcnt({3-n})")
        for c in range(4):
            e(f"v_lshlrev_b32 v160, 16, v{132+4*n+c}"); e(f"v_and_b32 v161, 0xffff0000, v{132+4*n+c}")
            if n==0:
                e(f"v_mul_f32 v{152+2*c}, v160, v148"); e(f"v_mul_f32 v{153+2*c}, v161, v148")
            else:
                e(f"v_fmac_f32 v{152+2*c}, v160, v{148+n}"); e(f"v_fmac_f32 v{153+2*c}, v161, v{148+n}")
    for k in range(8):
        e(f"v_add_f32_dpp v{152+k}, v{152+k}, v{152+k} row_ror:8 row_mask:0xf bank_mask:0xf")
    execm("0x00ff00ff","0x00ff00ff")
    e(f"ds_write_b128 v11, v[152:155] offset:{L_QP}")
    e(f"ds_write_b128 v11, v[156:159] offset:{L_QP+16}")
    execall()
    e("v_mov_b32 v21, 1")
    e("s_waitcnt lgkmcnt(0)")
    lds_signal("v22",0,"v21")
    e("s_cmp_lg_u32 s3, 0"); e("s_cbranch_scc1 L_noq")
    e("v_lshlrev_b32 v12, 2, v1"); e("v_lshlrev_b32 v13, 3, v1")
    e(f"s_lshl_b32 {T0}, s48, 14"); e(f"s_lshr_b32 {T1}, s49, 3"); e(f"s_lshl_b32 {T1}, {T1}, 12"); e(f"s_add_u32 s60, {T0}, {T1}")
    e(f"s_and_b32 {T1}, s49, 7"); e(f"s_lshl_b32 {T1}, {T1}, 9"); e(f"s_add_u32 s60, s60, {T1}")
    lds_wait("v22",0,lambda t: e(f"s_cmp_lt_u32 {t}, 4"))
    for k in range(16): e(f"ds_read_b32 v{144+k}, v12 offset:{L_QP+256*k}")
    e(f"s_add_u32 {T1}, s60, {WS_QS}"); e(f"s_add_u32 {T0}, s60, {WS_QA}")
    e("s_mov_b32 s60, 0x05040100")
    e("s_waitcnt lgkmcnt(0)")
    for stp in (1,2,4,8):
        for k in range(0,16,2*stp): e(f"v_add_f32 v{144+k}, v{144+k}, v{144+k+stp}")
    e("v_mov_b32_dpp v146, v144 quad_perm:[1,0,3,2] row_mask:0xf bank_mask:0xf")
    e("v_mov_b32 v145, s63"); e("v_mov_b32 v147, s63")
    execm("0x55555555","0x55555555")
    if not force_slow: e(f"buffer_store_dwordx4 v[144:147], v13, s[40:43], {T0} offen")
    e(f"buffer_store_dwordx4 v[144:147], v13, s[40:43], {T1} offen sc1")
    execm(1,0)
    e("v_mov_b32 v21, 1")
    e("ds_write_b32 v22, v21 offset:4")
    execall()
    e("L_noq:")
    ST("qpub")
    e("s_barrier")
    if evenW: parity_scc()
    nv=0
    for s_ in range(2):
        for hh in range(2):
            for ee in range(8):
                of=s_*16384+ee*2048+hh*256
                r=64+64*s_+32*hh+4*ee
                throttle(nv)
                if vwin and nv>=vwin: e(f"s_waitcnt vmcnt({vwin-1})")
                nv+=1
                e(f"buffer_load_dwordx4 v[{r}:{r+3}], v3, s[24:27], s{52+of//4096} offen offset:{of%4096}{nt}")
    ST("Viss")
    e("L_join:")
    e("s_waitcnt lgkmcnt(0)")
    e("s_barrier")
    ST("P")
    e("s_cmp_lt_u32 s3, 4"); e("s_cbranch_scc1 L_vpv")
    if not earlyml:
        e("s_cmp_lg_u32 s3, 4"); e("s_cbranch_scc1 L_noml2")
        e(f"ds_read_b128 v[232:235], v18 offset:{L_MX}")
        e(f"ds_read_b128 v[236:239], v18 offset:{L_LS}")
        e("s_waitcnt lgkmcnt(0)")
        ml_compute(241,242); ml_publish()
        e("L_noml2:")
    e(f"s_lshl_b32 {T0}, s48, 9"); e(f"s_lshl_b32 {T1}, s49, 4"); e(f"s_add_u32 {T0}, {T0}, {T1}")
    e(f"s_and_b32 {T1}, s3, 3"); e(f"s_lshl_b32 {T1}, {T1}, 2"); e(f"s_add_u32 {T0}, {T0}, {T1}"); e(f"s_mul_i32 {T0}, {T0}, 896")
    e("s_mov_b32 exec_hi, 0x00ffffff")
    for n in range(4): e(f"buffer_load_dwordx4 v[{64+4*n}:{67+4*n}], v14, s[36:39], {T0} offen offset:{896*n}{nt}")
    execall()
    e("s_cmp_lg_u32 s3, 6"); e("s_cbranch_scc1 L_nopre")
    e(f"s_lshl_b32 {T0}, s48, 17"); e(f"s_lshl_b32 {T1}, s49, 12"); e(f"s_add_u32 {T0}, {T0}, {T1}"); e(f"s_add_u32 {T0}, {T0}, {WS_OB}")
    e("v_lshlrev_b32 v8, 7, v1")
    e("s_mov_b32 exec_hi, 0")
    e(f"buffer_load_dword v52, v8, s[40:43], {T0} offen sc1")
    execall()
    e("L_nopre:")
    e("s_cmp_lg_u32 s3, 5"); e("s_cbranch_scc1 L_nopre2")
    e(f"s_cmp_ge_u32 s49, {NRED}"); e("s_cbranch_scc1 L_nopre2")
    e(f"s_mul_i32 {T0}, s48, {28*4096}"); e(f"s_lshl_b32 {T1}, s49, 12"); e(f"s_add_u32 {T0}, {T0}, {T1}"); e(f"s_add_u32 {T0}, {T0}, {WS_OC}")
    e("v_lshlrev_b32 v8, 7, v1")
    e("s_mov_b32 exec_hi, 0")
    e(f"buffer_load_dword v52, v8, s[40:43], {T0} offen sc1")
    execall()
    e("L_nopre2:")
    e("s_cmp_lg_u32 s3, 7"); e("s_cbranch_scc1 L_nogp")
    e("v_bfe_u32 v8, v1, 1, 4"); e("v_lshlrev_b32 v25, 7, v8")
    e("v_lshrrev_b32 v9, 5, v1"); e("v_lshl_add_u32 v25, v9, 6, v25")
    e("v_and_b32 v9, 1, v1"); e("v_lshl_add_u32 v25, v9, 5, v25")
    e("v_lshlrev_b32 v26, 4, v8")
    e(f"s_lshl_b32 {T0}, s48, 17"); e(f"s_lshl_b32 {T1}, s49, 12"); e(f"s_add_u32 {T0}, {T0}, {T1}"); e(f"s_add_u32 s60, {T0}, {WS_OB}")
    e(f"s_lshl_b32 {T1}, s48, 1"); e(f"s_lshr_b32 {T0}, s49, 4"); e(f"s_add_u32 {T1}, {T1}, {T0}"); e(f"s_lshl_b32 {T1}, {T1}, 9"); e(f"s_add_u32 s61, {T1}, {WS_ML}")
    e("buffer_load_dwordx4 v[144:147], v26, s[40:43], s61 offen sc1")
    e("buffer_load_dwordx4 v[148:151], v26, s[40:43], s61 offen offset:256 sc1")
    e("v_lshrrev_b32 v27, 5, v1"); e("v_lshlrev_b32 v27, 5, v27"); e("v_lshl_add_u32 v27, v9, 4, v27")
    e("L_nogp:")
    e(f"s_and_b32 {T1}, s3, 3"); e(f"s_mul_i32 {T1}, {T1}, 3584"); e(f"v_add_u32 v20, {T1}, v14")
    e("s_barrier")
    e("s_cmp_eq_u32 s3, 7"); e("s_cbranch_scc1 L_wo7")
    e("s_waitcnt vmcnt(0)")
    e("s_branch L_wost")
    e("L_wo7:")
    def oload(b):
        for k_,of_ in enumerate((0,16,2048,2064)):
            e(f"buffer_load_dwordx4 v[{b+4*k_}:{b+4*k_+3}], v25, s[40:43], s60 offen offset:{of_} sc1")
    oload(128)
    e("s_waitcnt vmcnt(6)")
    e("L_wost:")
    e("s_mov_b32 exec_hi, 0x00ffffff")
    for n in range(4): e(f"ds_write_b128 v20, v[{64+4*n}:{67+4*n}] offset:{L_WO+896*n}")
    execall()
    e("v_mov_b32 v21, 1")
    e("s_waitcnt lgkmcnt(0)")
    lds_signal("v22",12,"v21")
    e("s_cmp_lg_u32 s3, 7"); e("s_cbranch_scc1 L_nob")
    e(f"s_mov_b32 {SPIN}, {spin_limit}")
    e("s_waitcnt vmcnt(4)")
    e("L_mlchk:")
    e("v_min3_u32 v152, v145, v147, v149"); e("v_max3_u32 v153, v145, v147, v149")
    e("v_min_u32 v152, v152, v151"); e("v_max_u32 v153, v153, v151")
    e(f"v_xor_b32 v152, {TAG}, v152"); e(f"v_xor_b32 v153, {TAG}, v153"); e("v_or_b32 v152, v152, v153")
    e("v_cmp_ne_u32 vcc, 0, v152")
    e("s_cbranch_vccz L_mlok")
    e(f"s_sub_u32 {SPIN}, {SPIN}, 1"); e(f"s_cmp_eq_u32 {SPIN}, 0"); e("s_cbranch_scc1 L_mlok")
    e("buffer_load_dwordx4 v[144:147], v26, s[40:43], s61 offen sc1")
    e("buffer_load_dwordx4 v[148:151], v26, s[40:43], s61 offen offset:256 sc1")
    e("s_waitcnt vmcnt(0)")
    e("s_branch L_mlchk")
    e("L_mlok:")
    def allred(op,regs_,tmps):
        for s_ in (2,4,8):
            for r in regs_: e(f"{op}_dpp v{r}, v{r}, v{r} row_ror:{s_} row_mask:0xf bank_mask:0xf")
        for r,t in zip(regs_,tmps): e(f"v_mov_b32 v{t}, v{r}")
        for r,t in zip(regs_,tmps): e(f"v_permlane16_swap_b32 v{t}, v{r}")
        for r,t in zip(regs_,tmps): e(f"{op} v{r}, v{r}, v{t}")
    e("v_max_f32 v152, v144, v148")
    allred("v_max_f32",[152],[153])
    e("v_sub_f32 v144, v144, v152"); e("v_sub_f32 v148, v148, v152")
    e("v_exp_f32 v144, v144"); e("v_exp_f32 v148, v148")
    e("v_mul_f32 v154, v144, v146"); e("v_fmac_f32 v154, v148, v150")
    allred("v_add_f32",[154],[155])
    e("v_rcp_f32 v154, v154")
    e("v_mul_f32 v144, v144, v154"); e("v_mul_f32 v148, v148, v154")
    e(f"s_mov_b32 {SPIN}, {spin_limit}")
    if stamp: e("s_mov_b32 s63, 0")
    def bcheck(b):
        e(f"v_min3_u32 v152, v{b+1}, v{b+3}, v{b+5}"); e(f"v_max3_u32 v153, v{b+1}, v{b+3}, v{b+5}")
        e(f"v_min3_u32 v152, v152, v{b+7}, v{b+9}"); e(f"v_max3_u32 v153, v153, v{b+7}, v{b+9}")
        e(f"v_min3_u32 v152, v152, v{b+11}, v{b+13}"); e(f"v_max3_u32 v153, v153, v{b+11}, v{b+13}")
        e(f"v_min_u32 v152, v152, v{b+15}"); e(f"v_max_u32 v153, v153, v{b+15}")
        for k in range(4): e(f"v_mul_f32 v{156+k}, v144, v{b+2*k}")
        e(f"v_xor_b32 v152, {TAG}, v152"); e(f"v_xor_b32 v153, {TAG}, v153"); e("v_or_b32 v152, v152, v153")
        for k in range(4): e(f"v_fmac_f32 v{156+k}, v148, v{b+8+2*k}")
        e("v_cmp_ne_u32 vcc, 0, v152")
        e("s_cbranch_vccz L_bok")
    e("L_bchk:")
    if stamp: e("s_add_u32 s63, s63, 1")
    if pipe:
        oload(164); e("s_waitcnt vmcnt(4)"); bcheck(128)
        oload(128); e("s_waitcnt vmcnt(4)"); bcheck(164)
        e(f"s_sub_u32 {SPIN}, {SPIN}, 1"); e(f"s_cmp_lg_u32 {SPIN}, 0"); e("s_cbranch_scc1 L_bchk")
    else:
        e("s_waitcnt vmcnt(0)"); bcheck(128)
        e(f"s_sub_u32 {SPIN}, {SPIN}, 1"); e(f"s_cmp_eq_u32 {SPIN}, 0"); e("s_cbranch_scc1 L_bok")
        oload(128)
        e("s_branch L_bchk")
    e("L_bok:")
    ST("Bok")
    allred("v_add_f32",[156,157,158,159],[160,161,162,163])
    e("v_cvt_pk_bf16_f32 v160, v156, v157"); e("v_cvt_pk_bf16_f32 v161, v158, v159")
    e("v_lshlrev_b32 v156, 16, v160"); e("v_and_b32 v157, 0xffff0000, v160")
    e("v_lshlrev_b32 v158, 16, v161"); e("v_and_b32 v159, 0xffff0000, v161")
    execm(3,3)
    e(f"ds_write_b128 v27, v[156:159] offset:{L_OV}")
    execall()
    e("s_branch L_nob")
    e("L_vpv:")
    e("v_lshlrev_b32 v18, 4, v16")
    e(f"ds_read_b128 v[232:235], v18 offset:{L_MX}")
    e(f"ds_read_b128 v[236:239], v18 offset:{L_LS}")
    e("ds_read_b32 v240, v22 offset:8")
    e(f"s_lshl_b32 {T1}, s3, 11"); e("v_lshlrev_b32 v20, 4, v1"); e(f"v_add_u32 v20, {T1}, v20")
    e(f"ds_read_b128 v[192:195], v20 offset:{L_P}")
    e(f"ds_read_b128 v[196:199], v20 offset:{L_P+1024}")
    e("s_waitcnt lgkmcnt(0)")
    e("v_readfirstlane_b32 s62, v240"); e("s_lshr_b32 s62, s62, 8")
    ml_compute(241,242)
    e("v_lshlrev_b32 v23, 16, v16")
    e("v_lshl_add_u32 v23, v7, 13, v23")
    e("v_bfe_u32 v8, v1, 3, 1"); e("v_lshl_add_u32 v23, v8, 5, v23")
    e("v_and_b32 v8, 2, v1"); e("v_lshl_add_u32 v23, v8, 3, v23")
    e("v_and_b32 v8, 1, v1"); e("v_lshl_add_u32 v23, v8, 6, v23")
    e("v_lshlrev_b32 v21, 2, v1")
    e(f"s_lshl_b32 {T1}, s3, 9"); e(f"v_add_u32 v24, {T1}, v21")
    e(f"s_lshl_b32 {T1}, s3, 11"); e(f"v_add_u32 v25, {T1}, v21")
    def mask(s_):
        for t in range(8):
            for u in range(4):
                e(f"v_cndmask_b32 v{200+4*t+u}, 0, v{192+4*s_+u}, s[{64+2*t}:{65+2*t}]")
    def pv(s_,hh,first):
        acc=244+4*hh
        base=64+64*s_+32*hh
        for c in range(4):
            tb=(36 if c%2==0 else 44)
            for u in range(4):
                e(f"v_perm_b32 v{tb+u}, v{base+4*(2*u+1)+c}, v{base+4*(2*u)+c}, s60")
            for u in range(4):
                e(f"v_perm_b32 v{tb+4+u}, v{base+4*(2*u+1)+c}, v{base+4*(2*u)+c}, s61")
            for par in range(2):
                t=2*c+par
                C="0" if (first and c==0 and par==0) else f"v[{acc}:{acc+3}]"
                e(f"v_mfma_f32_16x16x32_bf16 v[{acc}:{acc+3}], v[{tb+4*par}:{tb+4*par+3}], v[{200+4*t}:{203+4*t}], {C}")
    mask(0)
    e("s_waitcnt vmcnt(24)"); pv(0,0,True)
    e("s_waitcnt vmcnt(16)"); pv(0,1,True)
    mask(1)
    e("s_waitcnt vmcnt(8)"); pv(1,0,False)
    for r in range(4): e(f"ds_write_b32 v25, v{244+r} offset:{L_OR+r*256}")
    e(f"s_lshl_b32 {T0}, s48, 17"); e(f"s_lshl_b32 {T1}, s49, 7"); e(f"s_add_u32 {T0}, {T0}, {T1}"); e(f"s_add_u32 {T0}, {T0}, {WS_OB}")
    e(f"s_bfe_u32 {T1}, s3, 0x10001"); e(f"s_lshl_b32 {T1}, {T1}, 15"); e(f"s_add_u32 {T0}, {T0}, {T1}")
    e(f"s_and_b32 {T1}, s3, 1"); e(f"s_lshl_b32 {T1}, {T1}, 12"); e(f"s_add_u32 {T0}, {T0}, {T1}")
    e(f"v_mov_b32 v197, {TAG}"); e(f"v_mov_b32 v199, {TAG}")
    e("s_waitcnt vmcnt(0)")
    ST("V1done")
    pv(1,1,False)
    e("s_mov_b32 s64, 0x55555555"); e("s_mov_b32 s65, 0x55555555")
    for r in range(4): e(f"ds_write_b32 v25, v{248+r} offset:{L_OR+1024+r*256}")
    e("s_waitcnt lgkmcnt(0)")
    e("s_barrier")
    for k in range(4): e(f"ds_read_b32 v{192+k}, v24 offset:{L_OR+2048*k}")
    for k in range(4): e(f"ds_read_b32 v{200+k}, v24 offset:{L_OR+2048*k+256}")
    e("s_waitcnt lgkmcnt(0)")
    e("v_mul_f32 v252, v192, v232"); e("v_mul_f32 v254, v200, v232")
    for k in range(1,4): e(f"v_fmac_f32 v252, v{192+k}, v{232+k}"); e(f"v_fmac_f32 v254, v{200+k}, v{232+k}")
    e("v_mov_b32_dpp v192, v252 quad_perm:[1,0,3,2] row_mask:0xf bank_mask:0xf")
    e("v_mov_b32_dpp v193, v254 quad_perm:[1,0,3,2] row_mask:0xf bank_mask:0xf")
    e("v_cndmask_b32 v196, v193, v252, s[64:65]")
    e("v_cndmask_b32 v198, v254, v192, s[64:65]")
    store2(f"buffer_store_dwordx4 v[196:199], v23, s[40:43], {T0} offen")
    ST("pub")
    e("L_nob:")
    e("v_lshrrev_b32 v20, 5, v1"); e("v_mul_u32_u24 v20, 7168, v20"); e("v_and_b32 v8, 31, v1"); e("v_lshl_add_u32 v20, v8, 2, v20")
    e(f"s_lshl_b32 {T1}, s3, 7"); e(f"v_add_u32 v20, {T1}, v20")
    e("s_cmp_eq_u32 s3, 7"); e("s_cbranch_scc1 L_nowr")
    lds_wait("v22",12,lambda t: e(f"s_cmp_lt_u32 {t}, 4"))
    for r8 in range(8): e(f"ds_read_b32 v{28+r8}, v20 offset:{L_WO+896*r8}")
    e("v_lshrrev_b32 v27, 3, v1"); e("v_lshlrev_b32 v27, 12, v27")
    e("v_and_b32 v9, 7, v1"); e("v_lshl_add_u32 v27, v9, 4, v27")
    e(f"s_mul_i32 {T0}, s48, {28*4096}"); e(f"s_lshl_b32 {T1}, s3, 14"); e(f"s_add_u32 {T0}, {T0}, {T1}"); e(f"s_lshl_b32 {T1}, s49, 7"); e(f"s_add_u32 {T0}, {T0}, {T1}"); e(f"s_add_u32 {T0}, {T0}, {WS_OC}")
    e(f"v_mov_b32 v105, {TAG}"); e(f"v_mov_b32 v107, {TAG}")
    e("s_waitcnt lgkmcnt(0)")
    for r8 in range(8):
        e(f"v_lshlrev_b32 v{36+2*r8}, 16, v{28+r8}"); e(f"v_and_b32 v{37+2*r8}, 0xffff0000, v{28+r8}")
    e("L_nowr:")
    e("v_lshrrev_b32 v8, 5, v1"); e("v_lshlrev_b32 v8, 5, v8")
    e(f"s_mul_i32 s60, s48, {28*4096}"); e(f"s_lshl_b32 {T1}, s49, 12"); e(f"s_add_u32 s60, s60, {T1}"); e(f"s_add_u32 s60, s60, {WS_OC}")
    e("v_lshlrev_b32 v14, 4, v1")
    e("s_waitcnt lgkmcnt(0)")
    e("s_barrier")
    ST("B5")
    e("s_cmp_eq_u32 s3, 7"); e("s_cbranch_scc1 L_stageC")
    e(f"ds_read_b128 v[96:99], v8 offset:{L_OV}")
    e(f"ds_read_b128 v[100:103], v8 offset:{L_OV+16}")
    e("s_waitcnt lgkmcnt(1)")
    e("v_mul_f32 v104, v96, v36"); e("v_mul_f32 v106, v96, v37")
    e("v_mul_f32 v108, v97, v38"); e("v_mul_f32 v109, v97, v39")
    e("v_fmac_f32 v104, v98, v40"); e("v_fmac_f32 v106, v98, v41")
    e("v_fmac_f32 v108, v99, v42"); e("v_fmac_f32 v109, v99, v43")
    e("s_waitcnt lgkmcnt(0)")
    e("v_fmac_f32 v104, v100, v44"); e("v_fmac_f32 v106, v100, v45")
    e("v_fmac_f32 v108, v101, v46"); e("v_fmac_f32 v109, v101, v47")
    e("v_fmac_f32 v104, v102, v48"); e("v_fmac_f32 v106, v102, v49")
    e("v_fmac_f32 v108, v103, v50"); e("v_fmac_f32 v109, v103, v51")
    e("v_add_f32 v104, v104, v108"); e("v_add_f32 v106, v106, v109")
    e("v_mov_b32 v108, v104"); e("v_mov_b32 v109, v106")
    e("v_permlane32_swap_b32 v108, v104"); e("v_permlane32_swap_b32 v109, v106")
    e("v_add_f32 v104, v104, v108"); e("v_add_f32 v106, v106, v109")
    e("s_mov_b32 exec_hi, 0")
    store2(f"buffer_store_dwordx4 v[104:107], v27, s[40:43], {T0} offen")
    ST("Cpub")
    e("s_branch L_end")
    e("L_stageC:")
    e(f"s_cmp_ge_u32 s49, {NRED}"); e("s_cbranch_scc1 L_end")
    e(f"s_mov_b32 {SPIN}, {spin_limit}")
    e(f"s_lshl_b32 s61, s49, 10"); e(f"s_add_u32 s61, s61, {WS_OD}")
    e(f"s_lshl_b32 {T1}, s48, 7"); e(f"s_add_u32 {T1}, {T1}, s61")
    e(f"v_mov_b32 v105, {TAG}"); e(f"v_mov_b32 v107, {TAG}")
    def cload(b):
        for n in range(4): e(f"buffer_load_dwordx4 v[{b+4*n}:{b+4*n+3}], v14, s[40:43], s60 offen offset:{1024*n} sc1")
    def ccheck(b):
        e(f"v_min3_u32 v96, v{b+1}, v{b+3}, v{b+5}"); e(f"v_max3_u32 v97, v{b+1}, v{b+3}, v{b+5}")
        e(f"v_add_f32 v104, v{b}, v{b+4}"); e(f"v_add_f32 v106, v{b+2}, v{b+6}")
        e(f"v_min3_u32 v96, v96, v{b+7}, v{b+9}"); e(f"v_max3_u32 v97, v97, v{b+7}, v{b+9}")
        e(f"v_add_f32 v108, v{b+8}, v{b+12}"); e(f"v_add_f32 v109, v{b+10}, v{b+14}")
        e(f"v_min3_u32 v96, v96, v{b+11}, v{b+13}"); e(f"v_max3_u32 v97, v97, v{b+11}, v{b+13}")
        e("v_add_f32 v104, v104, v108"); e("v_add_f32 v106, v106, v109")
        e(f"v_min_u32 v96, v96, v{b+15}"); e(f"v_max_u32 v97, v97, v{b+15}")
        e(f"v_xor_b32 v96, {TAG}, v96"); e(f"v_xor_b32 v97, {TAG}, v97"); e("v_or_b32 v96, v96, v97")
        e("v_add_f32_dpp v104, v104, v104 row_ror:8 row_mask:0xf bank_mask:0xf")
        e("v_add_f32_dpp v106, v106, v106 row_ror:8 row_mask:0xf bank_mask:0xf")
        e("v_cmp_ne_u32 vcc, 0, v96")
        e("s_cbranch_vccz L_cok")
    if pipe:
        cload(128)
        e("L_cpoll:")
        cload(164); e("s_waitcnt vmcnt(4)"); ccheck(128)
        cload(128); e("s_waitcnt vmcnt(4)"); ccheck(164)
    else:
        e("L_cpoll:")
        cload(128); e("s_waitcnt vmcnt(0)"); ccheck(128)
    e(f"s_sub_u32 {SPIN}, {SPIN}, 1"); e(f"s_cmp_lg_u32 {SPIN}, 0"); e("s_cbranch_scc1 L_cpoll")
    e("L_cok:")
    ST("Cok")
    def red1632(a,b):
        for sw in ("16","32"):
            e(f"v_mov_b32 v96, v{a}"); e(f"v_mov_b32 v97, v{b}")
            e(f"v_permlane{sw}_swap_b32 v96, v{a}"); e(f"v_permlane{sw}_swap_b32 v97, v{b}")
            e(f"v_add_f32 v{a}, v{a}, v96"); e(f"v_add_f32 v{b}, v{b}, v97")
    red1632(104,106)
    execm("0xff",0)
    e(f"buffer_store_dwordx4 v[104:107], v14, s[40:43], {T1} offen sc1")
    execall()
    e(f"s_and_b32 {T1}, s49, 7"); e(f"s_cmp_lg_u32 {T1}, s48"); e("s_cbranch_scc1 L_end")
    e(f"s_mov_b32 {SPIN}, {spin_limit}")
    def dload(b): e(f"buffer_load_dwordx4 v[{b}:{b+3}], v14, s[40:43], s61 offen sc1")
    def dcheck(b):
        e(f"v_xor_b32 v96, {TAG}, v{b+1}"); e(f"v_xor_b32 v97, {TAG}, v{b+3}"); e("v_or_b32 v96, v96, v97")
        e(f"v_add_f32_dpp v112, v{b}, v{b} row_ror:8 row_mask:0xf bank_mask:0xf")
        e(f"v_add_f32_dpp v113, v{b+2}, v{b+2} row_ror:8 row_mask:0xf bank_mask:0xf")
        e("v_cmp_ne_u32 vcc, 0, v96")
        e("s_cbranch_vccz L_dok")
    if pipe:
        dload(180)
        e("L_dpoll:")
        dload(184); e("s_waitcnt vmcnt(1)"); dcheck(180)
        dload(180); e("s_waitcnt vmcnt(1)"); dcheck(184)
    else:
        e("L_dpoll:")
        dload(180); e("s_waitcnt vmcnt(0)"); dcheck(180)
    e(f"s_sub_u32 {SPIN}, {SPIN}, 1"); e(f"s_cmp_lg_u32 {SPIN}, 0"); e("s_cbranch_scc1 L_dpoll")
    e("L_dok:")
    ST("Dok")
    red1632(112,113)
    e("v_cvt_pk_bf16_f32 v98, v112, v113")
    e(f"s_lshl_b32 {T1}, s49, 5")
    e("v_lshlrev_b32 v99, 2, v1")
    execm("0xff",0)
    e(f"buffer_store_dword v98, v99, s[44:47], {T1} offen")
    e("s_cmp_lg_u32 s49, 0"); e("s_cbranch_scc1 L_end")
    e("s_mov_b32 exec_lo, 1")
    e("v_mov_b32 v100, s50"); e("v_mov_b32 v101, 0")
    e("buffer_store_dword v100, v101, s[40:43], 0 offen sc1")
    e("L_end:")
    if stamp:
        ST("end")
        n=nst[0]
        execall()
        e("s_waitcnt lgkmcnt(0)")
        e(f"s_lshl_b32 {T0}, s2, 3"); e(f"s_add_u32 {T0}, {T0}, s3"); e(f"s_lshl_b32 {T0}, {T0}, 6"); e(f"s_add_u32 {T0}, {T0}, {WS_STAMP}")
        for i in range(16):
            e(f"v_mov_b32 v{96+i}, s{SREG(i)}" if i<n else (f"v_mov_b32 v{96+i}, s63" if i==15 else f"v_mov_b32 v{96+i}, 0"))
        e("v_mov_b32 v112, 0")
        execm(1,0)
        for q in range(4):
            e(f"buffer_store_dwordx4 v[{96+4*q}:{99+4*q}], v112, s[40:43], {T0} offen offset:{16*q}")
    e("L_done:"); e("s_endpgm")
    e('.section .rodata,"a"'); e(".p2align 6"); e(f".amdhsa_kernel {NAME}")
    e("  .amdhsa_next_free_vgpr 256"); e(f"  .amdhsa_next_free_sgpr 102"); e("  .amdhsa_accum_offset 256")
    e("  .amdhsa_group_segment_fixed_size 0"); e("  .amdhsa_kernarg_size 64"); e("  .amdhsa_user_sgpr_count 2")
    e("  .amdhsa_user_sgpr_kernarg_segment_ptr 1"); e("  .amdhsa_system_sgpr_workgroup_id_x 1"); e(".end_amdhsa_kernel")
    if stamp: open("stampnames.txt","w").write(",".join(names))
    return "\n".join(pad(o,verbose=True))+"\n"

STAMPS=["entry","Kiss","qrdy","soft","qpub","Viss","P","V1done","pub","Bok","B5","Cpub","Cok","Dok","end"]
if __name__=="__main__":
    from build import build
    def mk(nm,**kw):
        open(nm+".s","w").write(gen(**kw)); build(nm+".s",nm+".co")
    mk("k13"); mk("k13slow",force_slow=True); mk("k13s",stamp=STAMPS); mk("k13np",pipe=False)
```

```python
import sys, struct
from asmlib import pad

NAME="standalone__gqa_block_cached__decode_kernel"
def f32hex(x): return "0x%08x"%struct.unpack("<I",struct.pack("<f",x))[0]

WS_EPOCH=0
WS_ML=0x6000
WS_QA=0x40000
WS_QS=0x60000
WS_OB=0x100000
WS_OC=0x200000
WS_OD=0x300000
WS_STAMP=0x400000
WS_SIZE=0x800000
NRED=28
L_CNT=1024
L_MX=1088
L_LS=1152
L_OV=1216
L_RC=1280
L_P=2048
L_OR=10240
L_QB=18432
L_WO=19456
L_QP=19456+14336
L_TOTAL=19456+14336+4096

DOC = """
Fused GQA decode: q-projection, split-K attention, out-projection in one launch (256 workgroups, one per CU).
Workgroup wg: g = wg&7 (kv head, 2 q heads), j = wg>>3 (256 keys).  Waves 0-3 = V waves, waves 4-7 = K waves.
  V waves: 64-column x 112-row slice of x@wq -> {f32,tag} granules in d_ws; later stream V, P@V (MFMA), publish O partials.
  K waves: stream K, gather q (sum of 4 partials, bf16), QK^T (MFMA), softmax with the wave's true max, P -> LDS.
  Hand-offs carry a launch tag (epoch word of d_ws + 1) in every 8-byte granule.  Plain stores are used only when all 32
  producers of a group report the same XCC id as the consumer (same L2); otherwise write-through (sc1) stores.
  Stage B: workgroup (g,j) combines 16 rows of o over the 32 splits and applies its 16 rows of wo.
  Stage C1: column sums over the group, stage C2: sum over the 8 groups -> out.
"""
def SREG(i): return 80+2*i if i<10 else 4+2*(i-10)
T0,T1="s0","s1"
SPIN="s100"; CC="s101"
TAG="s51"

def gen(stamp=None, nt=" nt", spin_limit=1000000, force_slow=False, k0=5, k1=12, evenW=0, earlyml=True, cspec=True, kwin=10, vwin=0, pipe=True):
    o=[]; e=o.append
    nst=[0]; names=[]
    def ST(name):
        if stamp and (name in stamp):
            if name in names: i=names.index(name)
            else:
                i=nst[0]; nst[0]+=1; names.append(name)
            r=SREG(i); e(f"s_memrealtime s[{r}:{r+1}]")
    def srd(d,lo,size):
        e(f"s_mov_b32 s{d}, s{lo}"); e(f"s_mov_b32 s{d+1}, s{lo+1}"); e(f"s_mov_b32 s{d+2}, {size}"); e(f"s_mov_b32 s{d+3}, 0x20000")
    def execm(lo,hi):
        e(f"s_mov_b32 exec_lo, {lo}"); e(f"s_mov_b32 exec_hi, {hi}")
    def execall(): e("s_mov_b64 exec, -1")
    lab=[0]
    def lds_wait(addr_v, off, cond, tmp_v="v21", tmp_s="s0"):
        lab[0]+=1; L=f"L_w{lab[0]}"
        e(f"s_mov_b32 {SPIN}, {spin_limit}")
        e(f"{L}:")
        e(f"ds_read_b32 {tmp_v}, {addr_v} offset:{off}")
        e("s_waitcnt lgkmcnt(0)")
        e(f"v_readfirstlane_b32 {tmp_s}, {tmp_v}")
        e(f"s_sub_u32 {SPIN}, {SPIN}, 1"); e(f"s_cmp_eq_u32 {SPIN}, 0"); e(f"s_cbranch_scc1 {L}x")
        cond(tmp_s)
        e(f"s_cbranch_scc1 {L}")
        e(f"{L}x:")
    def lds_signal(addr_v, off, val_v):
        execm(1,0); e(f"ds_add_u32 {addr_v}, {val_v} offset:{off}"); execall()
    thr=[0]
    def parity_scc():
        e("s_getreg_b32 s0, hwreg(HW_REG_XCC_ID)"); e("s_and_b32 s0, s0, 1"); e("s_cmp_eq_u32 s0, 0")
    def throttle(n_issued):
        if evenW and n_issued>=evenW:
            thr[0]+=1
            e(f"s_cbranch_scc0 L_thr{thr[0]}"); e(f"s_waitcnt vmcnt({evenW-1})"); e(f"L_thr{thr[0]}:")
    def store2(ins_plain):
        lab[0]+=1; L=f"L_s{lab[0]}"
        e("s_cmp_lg_u32 s62, 0"); e(f"s_cbranch_scc1 {L}a")
        e(ins_plain); e(f"s_branch {L}b")
        e(f"{L}a:"); e(ins_plain+" sc1"); e(f"{L}b:")

    hdr=open("standalone__gqa_block_cached__decode.s.ref").read().split("\n")
    for l in hdr:
        if l.startswith("; Kernarg") or l.startswith(";   offset"): e(l)
    e(f"; @launch grid=(256,1,1) block=(512,1,1) lds={L_TOTAL}")
    for l in DOC.strip("\n").split("\n"): e("; "+l)
    e('.amdgcn_target "amdgcn-amd-amdhsa--gfx950"')
    e(".text"); e(f".globl {NAME}"); e(".p2align 8"); e(f".type {NAME},@function"); e(f"{NAME}:")
    ST("entry")
    e("s_cmp_ge_u32 s2, 256"); e("s_cbranch_scc1 L_done")
    e("s_load_dwordx16 s[4:19], s[0:1], 0")
    e("v_and_b32 v1, 63, v0")
    e("v_lshrrev_b32 v2, 6, v0")
    e("s_and_b32 s48, s2, 7")
    e("s_lshr_b32 s49, s2, 3")
    e("v_readfirstlane_b32 s3, v2")
    e("v_lshrrev_b32 v7, 4, v1")
    e("v_and_b32 v10, 3, v1")
    e("v_bfe_u32 v16, v1, 2, 1")
    e("s_lshl_b32 s52, s48, 22"); e(f"s_lshl_b32 {T0}, s49, 17"); e(f"s_add_u32 s52, s52, {T0}")
    e(f"s_and_b32 {T0}, s3, 3"); e(f"s_lshl_b32 {T0}, {T0}, 15"); e(f"s_add_u32 s52, s52, {T0}")
    for i in range(1,8): e(f"s_add_u32 s{52+i}, s52, {4096*i}")
    e(f"v_mov_b32 v22, {L_CNT}")
    e("v_lshlrev_b32 v14, 4, v1")
    for i in range(24,28): e(f"v_mov_b32 v{i}, 0")
    e("s_cmp_lt_u32 s3, 4"); e("s_cbranch_scc1 L_vwave")
    def common_consts():
        e("s_getreg_b32 s62, hwreg(HW_REG_XCC_ID)"); e("s_and_b32 s62, s62, 7")
        srd(36,12,3670016); srd(40,18,WS_SIZE); srd(44,14,896)
        e(f"s_mov_b32 {CC}, {f32hex(1.4426950408889634/16)}")
    def tags():
        e("s_add_u32 s50, s50, 1"); e(f"s_lshl_b32 {TAG}, s50, 3"); e(f"s_or_b32 s63, {TAG}, s62")
    e("v_lshlrev_b32 v2, 6, v7")
    e("v_bfe_u32 v8, v1, 2, 2")
    e("v_lshl_add_u32 v2, v8, 9, v2")
    e("v_lshl_add_u32 v2, v10, 4, v2")
    e("s_waitcnt lgkmcnt(0)")
    srd(20,6,0x2000000)
    def kload(n):
        of=(n//2)*2048+(n%2)*256
        e(f"buffer_load_dwordx4 v[{64+4*n}:{67+4*n}], v2, s[20:23], s{52+of//4096} offen offset:{of%4096}{nt}")
    for n in range(k0): kload(n)
    e("s_barrier")
    if kwin:
        for n in range(k0,kwin): kload(n)
        e("s_load_dword s50, s[18:19], 0")
        common_consts()
        for n in range(kwin,32):
            e(f"s_waitcnt vmcnt({kwin-1})"); kload(n)
        e("s_waitcnt lgkmcnt(0)")
    else:
        for n in range(k0,k1): kload(n)
        e("s_load_dword s50, s[18:19], 0")
        common_consts()
        lds_wait("v22",4,lambda t: e(f"s_cmp_eq_u32 {t}, 0"))
        if evenW: parity_scc()
        for n in range(k1,32):
            throttle(n); kload(n)
    tags()
    e(f"s_lshl_b32 {T0}, s48, 14"); e(f"s_and_b32 {T1}, s3, 3"); e(f"s_lshl_b32 {T1}, {T1}, 10"); e(f"s_add_u32 {T0}, {T0}, {T1}"); e(f"s_add_u32 s98, {T0}, {WS_QA}" if not stamp else f"s_add_u32 s47, {T0}, {WS_QA}")
    GB="s98" if not stamp else "s47"
    e("v_add_u32 v15, 4096, v14"); e("v_add_u32 v17, 0x2000, v14"); e("v_add_u32 v18, 0x3000, v14")
    def gload():
        for p_,va in enumerate(("v14","v15","v17","v18")):
            e(f"buffer_load_dwordx4 v[{192+4*p_}:{195+4*p_}], {va}, s[40:43], {GB} offen sc1")
    gload()
    ST("Kiss")
    e("s_barrier")
    e(f"s_mov_b32 {SPIN}, {spin_limit}")
    e("s_waitcnt vmcnt(0)")
    e("L_qchk:")
    for i in range(8): e(f"v_xor_b32 v{208+i}, s63, v{193+2*i}")
    e("v_or3_b32 v208, v208, v209, v210"); e("v_or3_b32 v211, v211, v212, v213"); e("v_or3_b32 v208, v208, v214, v215"); e("v_or_b32 v208, v208, v211")
    e("v_cmp_le_u32 vcc, 8, v208")
    e("s_cbranch_vccz L_qok")
    e(f"s_sub_u32 {SPIN}, {SPIN}, 1"); e(f"s_cmp_eq_u32 {SPIN}, 0"); e("s_cbranch_scc1 L_qok")
    e(f"s_xor_b32 {GB}, {GB}, {WS_QA^WS_QS}")
    e("s_setprio 3")
    gload()
    e("s_setprio 0")
    e("s_waitcnt vmcnt(0)")
    e("s_branch L_qchk")
    e("L_qok:")
    if stamp: e(f"s_sub_u32 s63, {spin_limit}, {SPIN}"); e("s_mov_b32 s47, 0x20000")
    e("v_cmp_ne_u32 vcc, 0, v208")
    e("v_add_f32 v192, v192, v196"); e("v_add_f32 v194, v194, v198"); e("v_add_f32 v200, v200, v204"); e("v_add_f32 v202, v202, v206")
    e("v_add_f32 v192, v192, v200"); e("v_add_f32 v194, v194, v202")
    e("s_cmp_lg_u64 vcc, 0"); e("s_cselect_b32 s1, 0x101, 1")
    if force_slow: e("s_mov_b32 s1, 0x101")
    e("v_cvt_pk_bf16_f32 v192, v192, v194")
    e("s_and_b32 s0, s3, 3"); e("s_lshl_b32 s0, s0, 8")
    e("v_lshlrev_b32 v15, 2, v1"); e("v_add_u32 v15, s0, v15")
    e(f"ds_write_b32 v15, v192 offset:{L_QB}")
    e("v_mov_b32 v21, s1")
    e("v_lshlrev_b32 v17, 9, v16"); e("v_lshl_add_u32 v17, v7, 6, v17"); e("v_lshl_add_u32 v17, v10, 4, v17")
    e("s_waitcnt lgkmcnt(0)")
    lds_signal("v22",8,"v21")
    def c_q(t): e(f"s_and_b32 s1, {t}, 0xff"); e("s_cmp_lt_u32 s1, 4")
    lds_wait("v22",8,c_q,tmp_s="s62")
    e("s_lshr_b32 s62, s62, 8")
    e(f"ds_read_b128 v[224:227], v17 offset:{L_QB}")
    e(f"ds_read_b128 v[228:231], v17 offset:{L_QB+256}")
    e("s_waitcnt lgkmcnt(0)")
    ST("qrdy")
    for bt in range(2):
        for n in range(8):
            t=8*bt+n
            e(f"v_mfma_f32_16x16x32_bf16 v[{192+4*n}:{195+4*n}], v[{64+8*t}:{67+8*t}], v[224:227], 0")
        for n in range(8):
            t=8*bt+n
            e(f"v_mfma_f32_16x16x32_bf16 v[{192+4*n}:{195+4*n}], v[{68+8*t}:{71+8*t}], v[228:231], v[{192+4*n}:{195+4*n}]")
        for n in range(8):
            e(f"v_mov_b32_dpp v{232+8*bt+n}, v{192+4*n} quad_perm:[0,0,0,0] row_mask:0xf bank_mask:0xf")
        for r in (1,2,3):
            for n in range(8):
                e(f"v_add_f32_dpp v{232+8*bt+n}, v{192+4*n+r}, v{232+8*bt+n} quad_perm:[{r},{r},{r},{r}] row_mask:0xf bank_mask:0xf")
    e("v_max3_f32 v248, v232, v233, v234")
    for k in range(235,247,2): e(f"v_max3_f32 v248, v248, v{k}, v{k+1}")
    e("v_max_f32 v248, v248, v247")
    e("v_mov_b32 v249, v248"); e("v_permlane16_swap_b32 v249, v248"); e("v_max_f32 v248, v248, v249")
    e("v_mov_b32 v249, v248"); e("v_permlane32_swap_b32 v249, v248"); e("v_max_f32 v248, v248, v249")
    e(f"v_mul_f32 v248, {CC}, v248")
    for n in range(16): e(f"v_fma_f32 v{232+n}, v{232+n}, {CC}, -v248")
    for n in range(16): e(f"v_exp_f32 v{232+n}, v{232+n}")
    for u in range(8): e(f"v_cvt_pk_bf16_f32 v{192+u}, v{232+2*u}, v{233+2*u}")
    for u in range(4): e(f"v_mov_b32 v{200+u}, 0x3f803f80")
    e("v_mfma_f32_16x16x32_bf16 v[204:207], v[200:203], v[192:195], 0")
    e("v_mfma_f32_16x16x32_bf16 v[204:207], v[200:203], v[196:199], v[204:207]")
    e(f"s_and_b32 {T0}, s3, 3"); e(f"s_lshl_b32 {T1}, {T0}, 11")
    e(f"v_add_u32 v20, {T1}, v14")
    e(f"ds_write_b128 v20, v[192:195] offset:{L_P}")
    e(f"ds_write_b128 v20, v[196:199] offset:{L_P+1024}")
    e(f"s_lshl_b32 {T1}, {T0}, 2")
    e("v_lshlrev_b32 v18, 4, v16"); e(f"v_add_u32 v19, {T1}, v18")
    execm("0x11",0)
    e(f"ds_write_b32 v19, v248 offset:{L_MX}")
    e(f"ds_write_b32 v19, v204 offset:{L_LS}")
    execall()
    def ml_compute(mreg,lreg):
        e(f"v_max3_f32 v{mreg}, v232, v233, v234"); e(f"v_max_f32 v{mreg}, v{mreg}, v235")
        for k in range(4): e(f"v_sub_f32 v{232+k}, v{232+k}, v{mreg}")
        for k in range(4): e(f"v_exp_f32 v{232+k}, v{232+k}")
        e(f"v_mul_f32 v{lreg}, v232, v236")
        for k in range(1,4): e(f"v_fmac_f32 v{lreg}, v{232+k}, v{236+k}")
    def ml_publish():
        e(f"v_mov_b32 v192, v241"); e(f"v_mov_b32 v193, {TAG}"); e("v_mov_b32 v194, v242"); e(f"v_mov_b32 v195, {TAG}")
        e("v_lshlrev_b32 v8, 9, v16")
        e(f"s_lshl_b32 {T1}, s48, 10"); e(f"s_lshl_b32 {T0}, s49, 4"); e(f"s_add_u32 {T1}, {T1}, {T0}"); e(f"s_add_u32 {T1}, {T1}, {WS_ML}")
        execm("0x11",0)
        store2(f"buffer_store_dwordx4 v[192:195], v8, s[40:43], {T1} offen")
        execall()
    if earlyml:
        e("v_mov_b32 v21, 1")
        e("s_waitcnt lgkmcnt(0)")
        lds_signal("v22",16,"v21")
        e("s_cmp_lg_u32 s3, 4"); e("s_cbranch_scc1 L_noeml")
        lds_wait("v22",16,lambda t: e(f"s_cmp_lt_u32 {t}, 4"))
        e(f"ds_read_b128 v[232:235], v18 offset:{L_MX}")
        e(f"ds_read_b128 v[236:239], v18 offset:{L_LS}")
        e("s_waitcnt lgkmcnt(0)")
        ml_compute(241,242)
        ml_publish()
        e("L_noeml:")
    ST("soft")
    e("s_branch L_join")
    e("L_vwave:")
    e(f"s_lshr_b32 {T0}, s49, 3"); e(f"s_mul_i32 {T0}, {T0}, 112"); e(f"s_mul_i32 {T1}, s3, 28"); e(f"s_add_u32 {T0}, {T0}, {T1}")
    e(f"s_lshl_b32 {T1}, {T0}, 1"); e("v_lshlrev_b32 v6, 2, v1"); e(f"v_add_u32 v6, {T1}, v6")
    e("v_mov_b32 v9, 0x10000000"); e("v_cmp_gt_u32 vcc, 14, v1"); e("v_cndmask_b32 v6, v9, v6, vcc")
    e("v_lshrrev_b32 v8, 3, v1")
    e(f"v_add_u32 v4, {T0}, v8")
    e(f"s_lshl_b32 {T0}, s48, 10"); e(f"s_and_b32 {T1}, s49, 7"); e(f"s_lshl_b32 {T1}, {T1}, 7"); e(f"s_add_u32 {T0}, {T0}, {T1}")
    e("v_and_b32 v11, 7, v1"); e("v_lshlrev_b32 v12, 4, v11")
    e("v_lshl_add_u32 v4, v4, 13, v12"); e(f"v_add_u32 v4, {T0}, v4")
    e("v_add_u32 v13, 0x30000, v4"); e("v_cmp_gt_u32 vcc, 32, v1"); e("v_cndmask_b32 v13, v9, v13, vcc")
    e("v_add_u32 v5, 0x10000, v4"); e("v_add_u32 v15, 0x20000, v4")
    e("ds_write_b128 v22, v[24:27]"); e("ds_write_b128 v22, v[24:27] offset:16")
    e("s_waitcnt lgkmcnt(0)")
    srd(28,10,3670016); srd(32,4,896)
    e("buffer_load_dword v128, v6, s[32:35], 0 offen")
    e(f"buffer_load_dwordx4 v[132:135], v4, s[28:31], 0 offen{nt}")
    e(f"buffer_load_dwordx4 v[136:139], v5, s[28:31], 0 offen{nt}")
    e(f"buffer_load_dwordx4 v[140:143], v15, s[28:31], 0 offen{nt}")
    e(f"buffer_load_dwordx4 v[144:147], v13, s[28:31], 0 offen{nt}")
    e("s_barrier")
    e("s_load_dword s50, s[18:19], 0")
    common_consts()
    srd(24,8,0x2000000)
    e("s_mov_b32 s60, 0x05040100"); e("s_mov_b32 s61, 0x07060302")
    for t in range(8):
        p=((1<<t)|(1<<(4+t))) if t<4 else ((1<<(8+t-4))|(1<<(12+t-4)))
        p=p*0x00010001
        e(f"s_mov_b32 s{64+2*t}, {hex(p)}"); e(f"s_mov_b32 s{65+2*t}, {hex(p)}")
    e("v_and_b32 v9, 15, v1"); e("v_lshlrev_b32 v3, 9, v7"); e("v_lshl_add_u32 v3, v9, 4, v3")
    e("v_and_b32 v12, 1, v8"); e("v_lshlrev_b32 v12, 4, v12"); e("v_sub_u32 v12, 16, v12")
    e("v_lshlrev_b32 v8, 2, v7")
    e("v_lshlrev_b32 v11, 5, v11"); e("v_lshl_add_u32 v11, v7, 8, v11"); e(f"s_lshl_b32 {T0}, s3, 10"); e(f"v_add_u32 v11, {T0}, v11")
    e("s_waitcnt vmcnt(4)")
    for n in range(4):
        if n: e(f"v_add_u32 v9, {16*n}, v8")
        e(f"ds_bpermute_b32 v{148+n}, {'v9' if n else 'v8'}, v128")
    e("s_waitcnt lgkmcnt(0)")
    tags()
    for n in range(4):
        e(f"v_lshlrev_b32 v{148+n}, v12, v{148+n}"); e(f"v_and_b32 v{148+n}, 0xffff0000, v{148+n}")
    for n in range(4):
        e(f"s_waitcnt vmcnt({3-n})")
        for c in range(4):
            e(f"v_lshlrev_b32 v160, 16, v{132+4*n+c}"); e(f"v_and_b32 v161, 0xffff0000, v{132+4*n+c}")
            if n==0:
                e(f"v_mul_f32 v{152+2*c}, v160, v148"); e(f"v_mul_f32 v{153+2*c}, v161, v148")
            else:
                e(f"v_fmac_f32 v{152+2*c}, v160, v{148+n}"); e(f"v_fmac_f32 v{153+2*c}, v161, v{148+n}")
    for k in range(8):
        e(f"v_add_f32_dpp v{152+k}, v{152+k}, v{152+k} row_ror:8 row_mask:0xf bank_mask:0xf")
    execm("0x00ff00ff","0x00ff00ff")
    e(f"ds_write_b128 v11, v[152:155] offset:{L_QP}")
    e(f"ds_write_b128 v11, v[156:159] offset:{L_QP+16}")
    execall()
    e("v_mov_b32 v21, 1")
    e("s_waitcnt lgkmcnt(0)")
    lds_signal("v22",0,"v21")
    e("s_cmp_lg_u32 s3, 0"); e("s_cbranch_scc1 L_noq")
    e("v_lshlrev_b32 v12, 2, v1"); e("v_lshlrev_b32 v13, 3, v1")
    e(f"s_lshl_b32 {T0}, s48, 14"); e(f"s_lshr_b32 {T1}, s49, 3"); e(f"s_lshl_b32 {T1}, {T1}, 12"); e(f"s_add_u32 s60, {T0}, {T1}")
    e(f"s_and_b32 {T1}, s49, 7"); e(f"s_lshl_b32 {T1}, {T1}, 9"); e(f"s_add_u32 s60, s60, {T1}")
    lds_wait("v22",0,lambda t: e(f"s_cmp_lt_u32 {t}, 4"))
    for k in range(16): e(f"ds_read_b32 v{144+k}, v12 offset:{L_QP+256*k}")
    e(f"s_add_u32 {T1}, s60, {WS_QS}"); e(f"s_add_u32 {T0}, s60, {WS_QA}")
    e("s_mov_b32 s60, 0x05040100")
    e("s_waitcnt lgkmcnt(0)")
    for stp in (1,2,4,8):
        for k in range(0,16,2*stp): e(f"v_add_f32 v{144+k}, v{144+k}, v{144+k+stp}")
    e("v_mov_b32_dpp v146, v144 quad_perm:[1,0,3,2] row_mask:0xf bank_mask:0xf")
    e("v_mov_b32 v145, s63"); e("v_mov_b32 v147, s63")
    execm("0x55555555","0x55555555")
    if not force_slow: e(f"buffer_store_dwordx4 v[144:147], v13, s[40:43], {T0} offen")
    e(f"buffer_store_dwordx4 v[144:147], v13, s[40:43], {T1} offen sc1")
    if not kwin:
        execm(1,0)
        e("v_mov_b32 v21, 1")
        e("ds_write_b32 v22, v21 offset:4")
    execall()
    e("L_noq:")
    ST("qpub")
    e("s_barrier")
    if evenW: parity_scc()
    nv=0
    for s_ in range(2):
        for hh in range(2):
            for ee in range(8):
                of=s_*16384+ee*2048+hh*256
                r=64+64*s_+32*hh+4*ee
                throttle(nv)
                if vwin and nv>=vwin: e(f"s_waitcnt vmcnt({vwin-1})")
                nv+=1
                e(f"buffer_load_dwordx4 v[{r}:{r+3}], v3, s[24:27], s{52+of//4096} offen offset:{of%4096}{nt}")
    ST("Viss")
    e("L_join:")
    e("s_waitcnt lgkmcnt(0)")
    e("s_barrier")
    ST("P")
    e("s_cmp_lt_u32 s3, 4"); e("s_cbranch_scc1 L_vpv")
    if not earlyml:
        e("s_cmp_lg_u32 s3, 4"); e("s_cbranch_scc1 L_noml2")
        e(f"ds_read_b128 v[232:235], v18 offset:{L_MX}")
        e(f"ds_read_b128 v[236:239], v18 offset:{L_LS}")
        e("s_waitcnt lgkmcnt(0)")
        ml_compute(241,242); ml_publish()
        e("L_noml2:")
    e(f"s_lshl_b32 {T0}, s48, 9"); e(f"s_lshl_b32 {T1}, s49, 4"); e(f"s_add_u32 {T0}, {T0}, {T1}")
    e(f"s_and_b32 {T1}, s3, 3"); e(f"s_lshl_b32 {T1}, {T1}, 2"); e(f"s_add_u32 {T0}, {T0}, {T1}"); e(f"s_mul_i32 {T0}, {T0}, 896")
    e("s_mov_b32 exec_hi, 0x00ffffff")
    for n in range(4): e(f"buffer_load_dwordx4 v[{64+4*n}:{67+4*n}], v14, s[36:39], {T0} offen offset:{896*n}{nt}")
    execall()
    e("s_cmp_lg_u32 s3, 6"); e("s_cbranch_scc1 L_nopre")
    e(f"s_lshl_b32 {T0}, s48, 17"); e(f"s_lshl_b32 {T1}, s49, 12"); e(f"s_add_u32 {T0}, {T0}, {T1}"); e(f"s_add_u32 {T0}, {T0}, {WS_OB}")
    e("v_lshlrev_b32 v8, 7, v1")
    e("s_mov_b32 exec_hi, 0")
    e(f"buffer_load_dword v52, v8, s[40:43], {T0} offen sc1")
    execall()
    e("L_nopre:")
    e("s_cmp_lg_u32 s3, 5"); e("s_cbranch_scc1 L_nopre2")
    e(f"s_cmp_ge_u32 s49, {NRED}"); e("s_cbranch_scc1 L_nopre2")
    e(f"s_mul_i32 {T0}, s48, {28*4096}"); e(f"s_lshl_b32 {T1}, s49, 12"); e(f"s_add_u32 {T0}, {T0}, {T1}"); e(f"s_add_u32 {T0}, {T0}, {WS_OC}")
    e("v_lshlrev_b32 v8, 7, v1")
    e("s_mov_b32 exec_hi, 0")
    e(f"buffer_load_dword v52, v8, s[40:43], {T0} offen sc1")
    execall()
    e("L_nopre2:")
    e("s_cmp_lg_u32 s3, 7"); e("s_cbranch_scc1 L_nogp")
    e("v_bfe_u32 v8, v1, 1, 4"); e("v_lshlrev_b32 v25, 7, v8")
    e("v_lshrrev_b32 v9, 5, v1"); e("v_lshl_add_u32 v25, v9, 6, v25")
    e("v_and_b32 v9, 1, v1"); e("v_lshl_add_u32 v25, v9, 5, v25")
    e("v_lshlrev_b32 v26, 4, v8")
    e(f"s_lshl_b32 {T0}, s48, 17"); e(f"s_lshl_b32 {T1}, s49, 12"); e(f"s_add_u32 {T0}, {T0}, {T1}"); e(f"s_add_u32 s60, {T0}, {WS_OB}")
    e(f"s_lshl_b32 {T1}, s48, 1"); e(f"s_lshr_b32 {T0}, s49, 4"); e(f"s_add_u32 {T1}, {T1}, {T0}"); e(f"s_lshl_b32 {T1}, {T1}, 9"); e(f"s_add_u32 s61, {T1}, {WS_ML}")
    e("buffer_load_dwordx4 v[144:147], v26, s[40:43], s61 offen sc1")
    e("buffer_load_dwordx4 v[148:151], v26, s[40:43], s61 offen offset:256 sc1")
    e("v_lshrrev_b32 v27, 5, v1"); e("v_lshlrev_b32 v27, 5, v27"); e("v_lshl_add_u32 v27, v9, 4, v27")
    e("L_nogp:")
    e(f"s_and_b32 {T1}, s3, 3"); e(f"s_mul_i32 {T1}, {T1}, 3584"); e(f"v_add_u32 v20, {T1}, v14")
    e("s_barrier")
    e("s_cmp_eq_u32 s3, 7"); e("s_cbranch_scc1 L_wo7")
    e("s_waitcnt vmcnt(0)")
    e("s_branch L_wost")
    e("L_wo7:")
    def oload(b):
        for k_,of_ in enumerate((0,16,2048,2064)):
            e(f"buffer_load_dwordx4 v[{b+4*k_}:{b+4*k_+3}], v25, s[40:43], s60 offen offset:{of_} sc1")
    oload(128)
    e("s_waitcnt vmcnt(6)")
    e("L_wost:")
    e("s_mov_b32 exec_hi, 0x00ffffff")
    for n in range(4): e(f"ds_write_b128 v20, v[{64+4*n}:{67+4*n}] offset:{L_WO+896*n}")
    execall()
    e("v_mov_b32 v21, 1")
    e("s_waitcnt lgkmcnt(0)")
    lds_signal("v22",12,"v21")
    e("s_cmp_lg_u32 s3, 7"); e("s_cbranch_scc1 L_nob")
    e(f"s_mov_b32 {SPIN}, {spin_limit}")
    e("s_waitcnt vmcnt(4)")
    e("L_mlchk:")
    e("v_min3_u32 v152, v145, v147, v149"); e("v_max3_u32 v153, v145, v147, v149")
    e("v_min_u32 v152, v152, v151"); e("v_max_u32 v153, v153, v151")
    e(f"v_xor_b32 v152, {TAG}, v152"); e(f"v_xor_b32 v153, {TAG}, v153"); e("v_or_b32 v152, v152, v153")
    e("v_cmp_ne_u32 vcc, 0, v152")
    e("s_cbranch_vccz L_mlok")
    e(f"s_sub_u32 {SPIN}, {SPIN}, 1"); e(f"s_cmp_eq_u32 {SPIN}, 0"); e("s_cbranch_scc1 L_mlok")
    e("buffer_load_dwordx4 v[144:147], v26, s[40:43], s61 offen sc1")
    e("buffer_load_dwordx4 v[148:151], v26, s[40:43], s61 offen offset:256 sc1")
    e("s_waitcnt vmcnt(0)")
    e("s_branch L_mlchk")
    e("L_mlok:")
    def allred(op,regs_,tmps):
        for s_ in (2,4,8):
            for r in regs_: e(f"{op}_dpp v{r}, v{r}, v{r} row_ror:{s_} row_mask:0xf bank_mask:0xf")
        for r,t in zip(regs_,tmps): e(f"v_mov_b32 v{t}, v{r}")
        for r,t in zip(regs_,tmps): e(f"v_permlane16_swap_b32 v{t}, v{r}")
        for r,t in zip(regs_,tmps): e(f"{op} v{r}, v{r}, v{t}")
    e("v_max_f32 v152, v144, v148")
    allred("v_max_f32",[152],[153])
    e("v_sub_f32 v144, v144, v152"); e("v_sub_f32 v148, v148, v152")
    e("v_exp_f32 v144, v144"); e("v_exp_f32 v148, v148")
    e("v_mul_f32 v154, v144, v146"); e("v_fmac_f32 v154, v148, v150")
    allred("v_add_f32",[154],[155])
    e("v_rcp_f32 v154, v154")
    e("v_mul_f32 v144, v144, v154"); e("v_mul_f32 v148, v148, v154")
    e(f"s_mov_b32 {SPIN}, {spin_limit}")
    if stamp: e("s_mov_b32 s63, 0")
    def bcheck(b):
        e(f"v_min3_u32 v152, v{b+1}, v{b+3}, v{b+5}"); e(f"v_max3_u32 v153, v{b+1}, v{b+3}, v{b+5}")
        e(f"v_min3_u32 v152, v152, v{b+7}, v{b+9}"); e(f"v_max3_u32 v153, v153, v{b+7}, v{b+9}")
        e(f"v_min3_u32 v152, v152, v{b+11}, v{b+13}"); e(f"v_max3_u32 v153, v153, v{b+11}, v{b+13}")
        e(f"v_min_u32 v152, v152, v{b+15}"); e(f"v_max_u32 v153, v153, v{b+15}")
        for k in range(4): e(f"v_mul_f32 v{156+k}, v144, v{b+2*k}")
        e(f"v_xor_b32 v152, {TAG}, v152"); e(f"v_xor_b32 v153, {TAG}, v153"); e("v_or_b32 v152, v152, v153")
        for k in range(4): e(f"v_fmac_f32 v{156+k}, v148, v{b+8+2*k}")
        e("v_cmp_ne_u32 vcc, 0, v152")
        e("s_cbranch_vccz L_bok")
    e("L_bchk:")
    if stamp: e("s_add_u32 s63, s63, 1")
    if pipe:
        oload(164); e("s_waitcnt vmcnt(4)"); bcheck(128)
        oload(128); e("s_waitcnt vmcnt(4)"); bcheck(164)
        e(f"s_sub_u32 {SPIN}, {SPIN}, 1"); e(f"s_cmp_lg_u32 {SPIN}, 0"); e("s_cbranch_scc1 L_bchk")
    else:
        e("s_waitcnt vmcnt(0)"); bcheck(128)
        e(f"s_sub_u32 {SPIN}, {SPIN}, 1"); e(f"s_cmp_eq_u32 {SPIN}, 0"); e("s_cbranch_scc1 L_bok")
        oload(128)
        e("s_branch L_bchk")
    e("L_bok:")
    ST("Bok")
    allred("v_add_f32",[156,157,158,159],[160,161,162,163])
    e("v_cvt_pk_bf16_f32 v160, v156, v157"); e("v_cvt_pk_bf16_f32 v161, v158, v159")
    e("v_lshlrev_b32 v156, 16, v160"); e("v_and_b32 v157, 0xffff0000, v160")
    e("v_lshlrev_b32 v158, 16, v161"); e("v_and_b32 v159, 0xffff0000, v161")
    execm(3,3)
    e(f"ds_write_b128 v27, v[156:159] offset:{L_OV}")
    execall()
    e("s_branch L_nob")
    e("L_vpv:")
    e("v_lshlrev_b32 v18, 4, v16")
    e(f"ds_read_b128 v[232:235], v18 offset:{L_MX}")
    e(f"ds_read_b128 v[236:239], v18 offset:{L_LS}")
    e("ds_read_b32 v240, v22 offset:8")
    e(f"s_lshl_b32 {T1}, s3, 11"); e("v_lshlrev_b32 v20, 4, v1"); e(f"v_add_u32 v20, {T1}, v20")
    e(f"ds_read_b128 v[192:195], v20 offset:{L_P}")
    e(f"ds_read_b128 v[196:199], v20 offset:{L_P+1024}")
    e("s_waitcnt lgkmcnt(0)")
    e("v_readfirstlane_b32 s62, v240"); e("s_lshr_b32 s62, s62, 8")
    ml_compute(241,242)
    e("v_lshlrev_b32 v23, 16, v16")
    e("v_lshl_add_u32 v23, v7, 13, v23")
    e("v_bfe_u32 v8, v1, 3, 1"); e("v_lshl_add_u32 v23, v8, 5, v23")
    e("v_and_b32 v8, 2, v1"); e("v_lshl_add_u32 v23, v8, 3, v23")
    e("v_and_b32 v8, 1, v1"); e("v_lshl_add_u32 v23, v8, 6, v23")
    e("v_lshlrev_b32 v21, 2, v1")
    e(f"s_lshl_b32 {T1}, s3, 9"); e(f"v_add_u32 v24, {T1}, v21")
    e(f"s_lshl_b32 {T1}, s3, 11"); e(f"v_add_u32 v25, {T1}, v21")
    def mask(s_):
        for t in range(8):
            for u in range(4):
                e(f"v_cndmask_b32 v{200+4*t+u}, 0, v{192+4*s_+u}, s[{64+2*t}:{65+2*t}]")
    def pv(s_,hh,first):
        acc=244+4*hh
        base=64+64*s_+32*hh
        for c in range(4):
            tb=(36 if c%2==0 else 44)
            for u in range(4):
                e(f"v_perm_b32 v{tb+u}, v{base+4*(2*u+1)+c}, v{base+4*(2*u)+c}, s60")
            for u in range(4):
                e(f"v_perm_b32 v{tb+4+u}, v{base+4*(2*u+1)+c}, v{base+4*(2*u)+c}, s61")
            for par in range(2):
                t=2*c+par
                C="0" if (first and c==0 and par==0) else f"v[{acc}:{acc+3}]"
                e(f"v_mfma_f32_16x16x32_bf16 v[{acc}:{acc+3}], v[{tb+4*par}:{tb+4*par+3}], v[{200+4*t}:{203+4*t}], {C}")
    mask(0)
    e("s_waitcnt vmcnt(24)"); pv(0,0,True)
    e("s_waitcnt vmcnt(16)"); pv(0,1,True)
    mask(1)
    e("s_waitcnt vmcnt(8)"); pv(1,0,False)
    for r in range(4): e(f"ds_write_b32 v25, v{244+r} offset:{L_OR+r*256}")
    e(f"s_lshl_b32 {T0}, s48, 17"); e(f"s_lshl_b32 {T1}, s49, 7"); e(f"s_add_u32 {T0}, {T0}, {T1}"); e(f"s_add_u32 {T0}, {T0}, {WS_OB}")
    e(f"s_bfe_u32 {T1}, s3, 0x10001"); e(f"s_lshl_b32 {T1}, {T1}, 15"); e(f"s_add_u32 {T0}, {T0}, {T1}")
    e(f"s_and_b32 {T1}, s3, 1"); e(f"s_lshl_b32 {T1}, {T1}, 12"); e(f"s_add_u32 {T0}, {T0}, {T1}")
    e(f"v_mov_b32 v197, {TAG}"); e(f"v_mov_b32 v199, {TAG}")
    e("s_waitcnt vmcnt(0)")
    ST("V1done")
    pv(1,1,False)
    e("s_mov_b32 s64, 0x55555555"); e("s_mov_b32 s65, 0x55555555")
    for r in range(4): e(f"ds_write_b32 v25, v{248+r} offset:{L_OR+1024+r*256}")
    e("s_waitcnt lgkmcnt(0)")
    e("s_barrier")
    for k in range(4): e(f"ds_read_b32 v{192+k}, v24 offset:{L_OR+2048*k}")
    for k in range(4): e(f"ds_read_b32 v{200+k}, v24 offset:{L_OR+2048*k+256}")
    e("s_waitcnt lgkmcnt(0)")
    e("v_mul_f32 v252, v192, v232"); e("v_mul_f32 v254, v200, v232")
    for k in range(1,4): e(f"v_fmac_f32 v252, v{192+k}, v{232+k}"); e(f"v_fmac_f32 v254, v{200+k}, v{232+k}")
    e("v_mov_b32_dpp v192, v252 quad_perm:[1,0,3,2] row_mask:0xf bank_mask:0xf")
    e("v_mov_b32_dpp v193, v254 quad_perm:[1,0,3,2] row_mask:0xf bank_mask:0xf")
    e("v_cndmask_b32 v196, v193, v252, s[64:65]")
    e("v_cndmask_b32 v198, v254, v192, s[64:65]")
    store2(f"buffer_store_dwordx4 v[196:199], v23, s[40:43], {T0} offen")
    ST("pub")
    e("L_nob:")
    e("v_lshrrev_b32 v20, 5, v1"); e("v_mul_u32_u24 v20, 7168, v20"); e("v_and_b32 v8, 31, v1"); e("v_lshl_add_u32 v20, v8, 2, v20")
    e(f"s_lshl_b32 {T1}, s3, 7"); e(f"v_add_u32 v20, {T1}, v20")
    e("s_cmp_eq_u32 s3, 7"); e("s_cbranch_scc1 L_nowr")
    lds_wait("v22",12,lambda t: e(f"s_cmp_lt_u32 {t}, 4"))
    for r8 in range(8): e(f"ds_read_b32 v{28+r8}, v20 offset:{L_WO+896*r8}")
    e("v_lshrrev_b32 v27, 3, v1"); e("v_lshlrev_b32 v27, 12, v27")
    e("v_and_b32 v9, 7, v1"); e("v_lshl_add_u32 v27, v9, 4, v27")
    e(f"s_mul_i32 {T0}, s48, {28*4096}"); e(f"s_lshl_b32 {T1}, s3, 14"); e(f"s_add_u32 {T0}, {T0}, {T1}"); e(f"s_lshl_b32 {T1}, s49, 7"); e(f"s_add_u32 {T0}, {T0}, {T1}"); e(f"s_add_u32 {T0}, {T0}, {WS_OC}")
    e(f"v_mov_b32 v105, {TAG}"); e(f"v_mov_b32 v107, {TAG}")
    e("s_waitcnt lgkmcnt(0)")
    for r8 in range(8):
        e(f"v_lshlrev_b32 v{36+2*r8}, 16, v{28+r8}"); e(f"v_and_b32 v{37+2*r8}, 0xffff0000, v{28+r8}")
    e("L_nowr:")
    e("v_lshrrev_b32 v8, 5, v1"); e("v_lshlrev_b32 v8, 5, v8")
    e(f"s_mul_i32 s60, s48, {28*4096}"); e(f"s_lshl_b32 {T1}, s49, 12"); e(f"s_add_u32 s60, s60, {T1}"); e(f"s_add_u32 s60, s60, {WS_OC}")
    e("v_lshlrev_b32 v14, 4, v1")
    e("s_waitcnt lgkmcnt(0)")
    e("s_barrier")
    ST("B5")
    e("s_cmp_eq_u32 s3, 7"); e("s_cbranch_scc1 L_stageC")
    e(f"ds_read_b128 v[96:99], v8 offset:{L_OV}")
    e(f"ds_read_b128 v[100:103], v8 offset:{L_OV+16}")
    e("s_waitcnt lgkmcnt(1)")
    e("v_mul_f32 v104, v96, v36"); e("v_mul_f32 v106, v96, v37")
    e("v_mul_f32 v108, v97, v38"); e("v_mul_f32 v109, v97, v39")
    e("v_fmac_f32 v104, v98, v40"); e("v_fmac_f32 v106, v98, v41")
    e("v_fmac_f32 v108, v99, v42"); e("v_fmac_f32 v109, v99, v43")
    e("s_waitcnt lgkmcnt(0)")
    e("v_fmac_f32 v104, v100, v44"); e("v_fmac_f32 v106, v100, v45")
    e("v_fmac_f32 v108, v101, v46"); e("v_fmac_f32 v109, v101, v47")
    e("v_fmac_f32 v104, v102, v48"); e("v_fmac_f32 v106, v102, v49")
    e("v_fmac_f32 v108, v103, v50"); e("v_fmac_f32 v109, v103, v51")
    e("v_add_f32 v104, v104, v108"); e("v_add_f32 v106, v106, v109")
    e("v_mov_b32 v108, v104"); e("v_mov_b32 v109, v106")
    e("v_permlane32_swap_b32 v108, v104"); e("v_permlane32_swap_b32 v109, v106")
    e("v_add_f32 v104, v104, v108"); e("v_add_f32 v106, v106, v109")
    e("s_mov_b32 exec_hi, 0")
    store2(f"buffer_store_dwordx4 v[104:107], v27, s[40:43], {T0} offen")
    ST("Cpub")
    e("s_branch L_end")
    e("L_stageC:")
    e(f"s_cmp_ge_u32 s49, {NRED}"); e("s_cbranch_scc1 L_end")
    e(f"s_mov_b32 {SPIN}, {spin_limit}")
    e(f"s_lshl_b32 s61, s49, 10"); e(f"s_add_u32 s61, s61, {WS_OD}")
    e(f"s_lshl_b32 {T1}, s48, 7"); e(f"s_add_u32 {T1}, {T1}, s61")
    e(f"v_mov_b32 v105, {TAG}"); e(f"v_mov_b32 v107, {TAG}")
    def cload(b):
        for n in range(4): e(f"buffer_load_dwordx4 v[{b+4*n}:{b+4*n+3}], v14, s[40:43], s60 offen offset:{1024*n} sc1")
    def ccheck(b):
        e(f"v_min3_u32 v96, v{b+1}, v{b+3}, v{b+5}"); e(f"v_max3_u32 v97, v{b+1}, v{b+3}, v{b+5}")
        e(f"v_add_f32 v104, v{b}, v{b+4}"); e(f"v_add_f32 v106, v{b+2}, v{b+6}")
        e(f"v_min3_u32 v96, v96, v{b+7}, v{b+9}"); e(f"v_max3_u32 v97, v97, v{b+7}, v{b+9}")
        e(f"v_add_f32 v108, v{b+8}, v{b+12}"); e(f"v_add_f32 v109, v{b+10}, v{b+14}")
        e(f"v_min3_u32 v96, v96, v{b+11}, v{b+13}"); e(f"v_max3_u32 v97, v97, v{b+11}, v{b+13}")
        e("v_add_f32 v104, v104, v108"); e("v_add_f32 v106, v106, v109")
        e(f"v_min_u32 v96, v96, v{b+15}"); e(f"v_max_u32 v97, v97, v{b+15}")
        e(f"v_xor_b32 v96, {TAG}, v96"); e(f"v_xor_b32 v97, {TAG}, v97"); e("v_or_b32 v96, v96, v97")
        e("v_add_f32_dpp v104, v104, v104 row_ror:8 row_mask:0xf bank_mask:0xf")
        e("v_add_f32_dpp v106, v106, v106 row_ror:8 row_mask:0xf bank_mask:0xf")
        e("v_cmp_ne_u32 vcc, 0, v96")
        e("s_cbranch_vccz L_cok")
    if pipe:
        cload(128)
        e("L_cpoll:")
        cload(164); e("s_waitcnt vmcnt(4)"); ccheck(128)
        cload(128); e("s_waitcnt vmcnt(4)"); ccheck(164)
    else:
        e("L_cpoll:")
        cload(128); e("s_waitcnt vmcnt(0)"); ccheck(128)
    e(f"s_sub_u32 {SPIN}, {SPIN}, 1"); e(f"s_cmp_lg_u32 {SPIN}, 0"); e("s_cbranch_scc1 L_cpoll")
    e("L_cok:")
    ST("Cok")
    def red1632(a,b):
        for sw in ("16","32"):
            e(f"v_mov_b32 v96, v{a}"); e(f"v_mov_b32 v97, v{b}")
            e(f"v_permlane{sw}_swap_b32 v96, v{a}"); e(f"v_permlane{sw}_swap_b32 v97, v{b}")
            e(f"v_add_f32 v{a}, v{a}, v96"); e(f"v_add_f32 v{b}, v{b}, v97")
    red1632(104,106)
    execm("0xff",0)
    e(f"buffer_store_dwordx4 v[104:107], v14, s[40:43], {T1} offen sc1")
    execall()
    e(f"s_and_b32 {T1}, s49, 7"); e(f"s_cmp_lg_u32 {T1}, s48"); e("s_cbranch_scc1 L_end")
    e(f"s_mov_b32 {SPIN}, {spin_limit}")
    def dload(b): e(f"buffer_load_dwordx4 v[{b}:{b+3}], v14, s[40:43], s61 offen sc1")
    def dcheck(b):
        e(f"v_xor_b32 v96, {TAG}, v{b+1}"); e(f"v_xor_b32 v97, {TAG}, v{b+3}"); e("v_or_b32 v96, v96, v97")
        e(f"v_add_f32_dpp v112, v{b}, v{b} row_ror:8 row_mask:0xf bank_mask:0xf")
        e(f"v_add_f32_dpp v113, v{b+2}, v{b+2} row_ror:8 row_mask:0xf bank_mask:0xf")
        e("v_cmp_ne_u32 vcc, 0, v96")
        e("s_cbranch_vccz L_dok")
    if pipe:
        dload(180)
        e("L_dpoll:")
        dload(184); e("s_waitcnt vmcnt(1)"); dcheck(180)
        dload(180); e("s_waitcnt vmcnt(1)"); dcheck(184)
    else:
        e("L_dpoll:")
        dload(180); e("s_waitcnt vmcnt(0)"); dcheck(180)
    e(f"s_sub_u32 {SPIN}, {SPIN}, 1"); e(f"s_cmp_lg_u32 {SPIN}, 0"); e("s_cbranch_scc1 L_dpoll")
    e("L_dok:")
    ST("Dok")
    red1632(112,113)
    e("v_cvt_pk_bf16_f32 v98, v112, v113")
    e(f"s_lshl_b32 {T1}, s49, 5")
    e("v_lshlrev_b32 v99, 2, v1")
    execm("0xff",0)
    e(f"buffer_store_dword v98, v99, s[44:47], {T1} offen")
    e("s_cmp_lg_u32 s49, 0"); e("s_cbranch_scc1 L_end")
    e("s_mov_b32 exec_lo, 1")
    e("v_mov_b32 v100, s50"); e("v_mov_b32 v101, 0")
    e("buffer_store_dword v100, v101, s[40:43], 0 offen sc1")
    e("L_end:")
    if stamp:
        ST("end")
        n=nst[0]
        execall()
        e("s_waitcnt lgkmcnt(0)")
        e(f"s_lshl_b32 {T0}, s2, 3"); e(f"s_add_u32 {T0}, {T0}, s3"); e(f"s_lshl_b32 {T0}, {T0}, 6"); e(f"s_add_u32 {T0}, {T0}, {WS_STAMP}")
        for i in range(16):
            e(f"v_mov_b32 v{96+i}, s{SREG(i)}" if i<n else (f"v_mov_b32 v{96+i}, s63" if i==15 else f"v_mov_b32 v{96+i}, 0"))
        e("v_mov_b32 v112, 0")
        execm(1,0)
        for q in range(4):
            e(f"buffer_store_dwordx4 v[{96+4*q}:{99+4*q}], v112, s[40:43], {T0} offen offset:{16*q}")
    e("L_done:"); e("s_endpgm")
    e('.section .rodata,"a"'); e(".p2align 6"); e(f".amdhsa_kernel {NAME}")
    e("  .amdhsa_next_free_vgpr 256"); e(f"  .amdhsa_next_free_sgpr 102"); e("  .amdhsa_accum_offset 256")
    e("  .amdhsa_group_segment_fixed_size 0"); e("  .amdhsa_kernarg_size 64"); e("  .amdhsa_user_sgpr_count 2")
    e("  .amdhsa_user_sgpr_kernarg_segment_ptr 1"); e("  .amdhsa_system_sgpr_workgroup_id_x 1"); e(".end_amdhsa_kernel")
    if stamp: open("stampnames.txt","w").write(",".join(names))
    return "\n".join(pad(o,verbose=True))+"\n"

STAMPS=["entry","Kiss","qrdy","soft","qpub","Viss","P","V1done","pub","Bok","B5","Cpub","Cok","Dok","end"]
if __name__=="__main__":
    from build import build
    def mk(nm,**kw):
        open(nm+".s","w").write(gen(**kw)); build(nm+".s",nm+".co")
    mk("k16"); mk("k16slow",force_slow=True); mk("k16s",stamp=STAMPS)
```

```python
import sys, struct
from asmlib import pad

NAME="standalone__gqa_block_cached__decode_kernel"
def f32hex(x): return "0x%08x"%struct.unpack("<I",struct.pack("<f",x))[0]

WS_EPOCH=0
WS_ML=0x6000
WS_QA=0x40000
WS_QS=0x60000
WS_OB=0x100000
WS_OC=0x200000
WS_OD=0x300000
WS_STAMP=0x400000
WS_SIZE=0x800000
NRED=28
L_CNT=1024
L_MX=1088
L_LS=1152
L_OV=1216
L_RC=1280
L_P=2048
L_OR=10240
L_QB=18432
L_WO=19456
L_QP=19456+14336
L_TOTAL=19456+14336+4096

DOC = """
Fused GQA decode: q-projection, split-K attention, out-projection in one launch (256 workgroups, one per CU).
Workgroup wg: g = wg&7 (kv head, 2 q heads), j = wg>>3 (256 keys).  Waves 0-3 = V waves, waves 4-7 = K waves.
  V waves: 64-column x 112-row slice of x@wq -> {f32,tag} granules in d_ws; later stream V, P@V (MFMA), publish O partials.
  K waves: stream K, gather q (sum of 4 partials, bf16), QK^T (MFMA), softmax with the wave's true max, P -> LDS.
  Hand-offs carry a launch tag (epoch word of d_ws + 1) in every 8-byte granule.  Plain stores are used only when all 32
  producers of a group report the same XCC id as the consumer (same L2); otherwise write-through (sc1) stores.
  Stage B: workgroup (g,j) combines 16 rows of o over the 32 splits and applies its 16 rows of wo.
  Stage C1: column sums over the group, stage C2: sum over the 8 groups -> out.
"""
def SREG(i): return 80+2*i if i<10 else 4+2*(i-10)
T0,T1="s0","s1"
SPIN="s100"; CC="s101"
TAG="s51"

def gen(stamp=None, nt=" nt", spin_limit=1000000, force_slow=False, k0=5, k1=12, evenW=0, earlyml=True, cspec=True, kwin=10, vwin=0, pipe=True, prio=True, prio2=False, vprio=False):
    o=[]; e=o.append
    nst=[0]; names=[]
    def ST(name):
        if stamp and (name in stamp):
            if name in names: i=names.index(name)
            else:
                i=nst[0]; nst[0]+=1; names.append(name)
            r=SREG(i); e(f"s_memrealtime s[{r}:{r+1}]")
    def srd(d,lo,size):
        e(f"s_mov_b32 s{d}, s{lo}"); e(f"s_mov_b32 s{d+1}, s{lo+1}"); e(f"s_mov_b32 s{d+2}, {size}"); e(f"s_mov_b32 s{d+3}, 0x20000")
    def execm(lo,hi):
        e(f"s_mov_b32 exec_lo, {lo}"); e(f"s_mov_b32 exec_hi, {hi}")
    def execall(): e("s_mov_b64 exec, -1")
    lab=[0]
    def lds_wait(addr_v, off, cond, tmp_v="v21", tmp_s="s0"):
        lab[0]+=1; L=f"L_w{lab[0]}"
        e(f"s_mov_b32 {SPIN}, {spin_limit}")
        e(f"{L}:")
        e(f"ds_read_b32 {tmp_v}, {addr_v} offset:{off}")
        e("s_waitcnt lgkmcnt(0)")
        e(f"v_readfirstlane_b32 {tmp_s}, {tmp_v}")
        e(f"s_sub_u32 {SPIN}, {SPIN}, 1"); e(f"s_cmp_eq_u32 {SPIN}, 0"); e(f"s_cbranch_scc1 {L}x")
        cond(tmp_s)
        e(f"s_cbranch_scc1 {L}")
        e(f"{L}x:")
    def lds_signal(addr_v, off, val_v):
        execm(1,0); e(f"ds_add_u32 {addr_v}, {val_v} offset:{off}"); execall()
    thr=[0]
    def parity_scc():
        e("s_getreg_b32 s0, hwreg(HW_REG_XCC_ID)"); e("s_and_b32 s0, s0, 1"); e("s_cmp_eq_u32 s0, 0")
    def throttle(n_issued):
        if evenW and n_issued>=evenW:
            thr[0]+=1
            e(f"s_cbranch_scc0 L_thr{thr[0]}"); e(f"s_waitcnt vmcnt({evenW-1})"); e(f"L_thr{thr[0]}:")
    def store2(ins_plain):
        lab[0]+=1; L=f"L_s{lab[0]}"
        e("s_cmp_lg_u32 s62, 0"); e(f"s_cbranch_scc1 {L}a")
        e(ins_plain); e(f"s_branch {L}b")
        e(f"{L}a:"); e(ins_plain+" sc1"); e(f"{L}b:")

    hdr=open("standalone__gqa_block_cached__decode.s.ref").read().split("\n")
    for l in hdr:
        if l.startswith("; Kernarg") or l.startswith(";   offset"): e(l)
    e(f"; @launch grid=(256,1,1) block=(512,1,1) lds={L_TOTAL}")
    for l in DOC.strip("\n").split("\n"): e("; "+l)
    e('.amdgcn_target "amdgcn-amd-amdhsa--gfx950"')
    e(".text"); e(f".globl {NAME}"); e(".p2align 8"); e(f".type {NAME},@function"); e(f"{NAME}:")
    ST("entry")
    e("s_cmp_ge_u32 s2, 256"); e("s_cbranch_scc1 L_done")
    e("s_load_dwordx16 s[4:19], s[0:1], 0")
    e("v_and_b32 v1, 63, v0")
    e("v_lshrrev_b32 v2, 6, v0")
    e("s_and_b32 s48, s2, 7")
    e("s_lshr_b32 s49, s2, 3")
    e("v_readfirstlane_b32 s3, v2")
    e("v_lshrrev_b32 v7, 4, v1")
    e("v_and_b32 v10, 3, v1")
    e("v_bfe_u32 v16, v1, 2, 1")
    e("s_lshl_b32 s52, s48, 22"); e(f"s_lshl_b32 {T0}, s49, 17"); e(f"s_add_u32 s52, s52, {T0}")
    e(f"s_and_b32 {T0}, s3, 3"); e(f"s_lshl_b32 {T0}, {T0}, 15"); e(f"s_add_u32 s52, s52, {T0}")
    for i in range(1,8): e(f"s_add_u32 s{52+i}, s52, {4096*i}")
    e(f"v_mov_b32 v22, {L_CNT}")
    e("v_lshlrev_b32 v14, 4, v1")
    for i in range(24,28): e(f"v_mov_b32 v{i}, 0")
    e("s_cmp_lt_u32 s3, 4"); e("s_cbranch_scc1 L_vwave")
    def common_consts():
        e("s_getreg_b32 s62, hwreg(HW_REG_XCC_ID)"); e("s_and_b32 s62, s62, 7")
        srd(36,12,3670016); srd(40,18,WS_SIZE); srd(44,14,896)
        e(f"s_mov_b32 {CC}, {f32hex(1.4426950408889634/16)}")
    def tags():
        e("s_add_u32 s50, s50, 1"); e(f"s_lshl_b32 {TAG}, s50, 3"); e(f"s_or_b32 s63, {TAG}, s62")
    e("v_lshlrev_b32 v2, 6, v7")
    e("v_bfe_u32 v8, v1, 2, 2")
    e("v_lshl_add_u32 v2, v8, 9, v2")
    e("v_lshl_add_u32 v2, v10, 4, v2")
    e("s_waitcnt lgkmcnt(0)")
    srd(20,6,0x2000000)
    def kload(n):
        of=(n//2)*2048+(n%2)*256
        e(f"buffer_load_dwordx4 v[{64+4*n}:{67+4*n}], v2, s[20:23], s{52+of//4096} offen offset:{of%4096}{nt}")
    for n in range(k0): kload(n)
    e("s_barrier")
    if kwin:
        for n in range(k0,kwin): kload(n)
        e("s_load_dword s50, s[18:19], 0")
        common_consts()
        for n in range(kwin,32):
            e(f"s_waitcnt vmcnt({kwin-1})"); kload(n)
        e("s_waitcnt lgkmcnt(0)")
    else:
        for n in range(k0,k1): kload(n)
        e("s_load_dword s50, s[18:19], 0")
        common_consts()
        lds_wait("v22",4,lambda t: e(f"s_cmp_eq_u32 {t}, 0"))
        if evenW: parity_scc()
        for n in range(k1,32):
            throttle(n); kload(n)
    tags()
    e(f"s_lshl_b32 {T0}, s48, 14"); e(f"s_and_b32 {T1}, s3, 3"); e(f"s_lshl_b32 {T1}, {T1}, 10"); e(f"s_add_u32 {T0}, {T0}, {T1}"); e(f"s_add_u32 s98, {T0}, {WS_QA}" if not stamp else f"s_add_u32 s47, {T0}, {WS_QA}")
    GB="s98" if not stamp else "s47"
    e("v_add_u32 v15, 4096, v14"); e("v_add_u32 v17, 0x2000, v14"); e("v_add_u32 v18, 0x3000, v14")
    def gload():
        for p_,va in enumerate(("v14","v15","v17","v18")):
            e(f"buffer_load_dwordx4 v[{192+4*p_}:{195+4*p_}], {va}, s[40:43], {GB} offen sc1")
    gload()
    ST("Kiss")
    e("s_barrier")
    e(f"s_mov_b32 {SPIN}, {spin_limit}")
    e("s_waitcnt vmcnt(0)")
    e("L_qchk:")
    for i in range(8): e(f"v_xor_b32 v{208+i}, s63, v{193+2*i}")
    e("v_or3_b32 v208, v208, v209, v210"); e("v_or3_b32 v211, v211, v212, v213"); e("v_or3_b32 v208, v208, v214, v215"); e("v_or_b32 v208, v208, v211")
    e("v_cmp_le_u32 vcc, 8, v208")
    e("s_cbranch_vccz L_qok")
    e(f"s_sub_u32 {SPIN}, {SPIN}, 1"); e(f"s_cmp_eq_u32 {SPIN}, 0"); e("s_cbranch_scc1 L_qok")
    e(f"s_xor_b32 {GB}, {GB}, {WS_QA^WS_QS}")
    e("s_setprio 3")
    gload()
    e("s_setprio 0")
    e("s_waitcnt vmcnt(0)")
    e("s_branch L_qchk")
    e("L_qok:")
    if stamp: e(f"s_sub_u32 s63, {spin_limit}, {SPIN}"); e("s_mov_b32 s47, 0x20000")
    e("v_cmp_ne_u32 vcc, 0, v208")
    e("v_add_f32 v192, v192, v196"); e("v_add_f32 v194, v194, v198"); e("v_add_f32 v200, v200, v204"); e("v_add_f32 v202, v202, v206")
    e("v_add_f32 v192, v192, v200"); e("v_add_f32 v194, v194, v202")
    e("s_cmp_lg_u64 vcc, 0"); e("s_cselect_b32 s1, 0x101, 1")
    if force_slow: e("s_mov_b32 s1, 0x101")
    e("v_cvt_pk_bf16_f32 v192, v192, v194")
    e("s_and_b32 s0, s3, 3"); e("s_lshl_b32 s0, s0, 8")
    e("v_lshlrev_b32 v15, 2, v1"); e("v_add_u32 v15, s0, v15")
    e(f"ds_write_b32 v15, v192 offset:{L_QB}")
    e("v_mov_b32 v21, s1")
    e("v_lshlrev_b32 v17, 9, v16"); e("v_lshl_add_u32 v17, v7, 6, v17"); e("v_lshl_add_u32 v17, v10, 4, v17")
    e("s_waitcnt lgkmcnt(0)")
    lds_signal("v22",8,"v21")
    def c_q(t): e(f"s_and_b32 s1, {t}, 0xff"); e("s_cmp_lt_u32 s1, 4")
    lds_wait("v22",8,c_q,tmp_s="s62")
    e("s_lshr_b32 s62, s62, 8")
    e(f"ds_read_b128 v[224:227], v17 offset:{L_QB}")
    e(f"ds_read_b128 v[228:231], v17 offset:{L_QB+256}")
    e("s_waitcnt lgkmcnt(0)")
    ST("qrdy")
    for bt in range(2):
        for n in range(8):
            t=8*bt+n
            e(f"v_mfma_f32_16x16x32_bf16 v[{192+4*n}:{195+4*n}], v[{64+8*t}:{67+8*t}], v[224:227], 0")
        for n in range(8):
            t=8*bt+n
            e(f"v_mfma_f32_16x16x32_bf16 v[{192+4*n}:{195+4*n}], v[{68+8*t}:{71+8*t}], v[228:231], v[{192+4*n}:{195+4*n}]")
        for n in range(8):
            e(f"v_mov_b32_dpp v{232+8*bt+n}, v{192+4*n} quad_perm:[0,0,0,0] row_mask:0xf bank_mask:0xf")
        for r in (1,2,3):
            for n in range(8):
                e(f"v_add_f32_dpp v{232+8*bt+n}, v{192+4*n+r}, v{232+8*bt+n} quad_perm:[{r},{r},{r},{r}] row_mask:0xf bank_mask:0xf")
    e("v_max3_f32 v248, v232, v233, v234")
    for k in range(235,247,2): e(f"v_max3_f32 v248, v248, v{k}, v{k+1}")
    e("v_max_f32 v248, v248, v247")
    e("v_mov_b32 v249, v248"); e("v_permlane16_swap_b32 v249, v248"); e("v_max_f32 v248, v248, v249")
    e("v_mov_b32 v249, v248"); e("v_permlane32_swap_b32 v249, v248"); e("v_max_f32 v248, v248, v249")
    e(f"v_mul_f32 v248, {CC}, v248")
    for n in range(16): e(f"v_fma_f32 v{232+n}, v{232+n}, {CC}, -v248")
    for n in range(16): e(f"v_exp_f32 v{232+n}, v{232+n}")
    for u in range(8): e(f"v_cvt_pk_bf16_f32 v{192+u}, v{232+2*u}, v{233+2*u}")
    for u in range(4): e(f"v_mov_b32 v{200+u}, 0x3f803f80")
    e("v_mfma_f32_16x16x32_bf16 v[204:207], v[200:203], v[192:195], 0")
    e("v_mfma_f32_16x16x32_bf16 v[204:207], v[200:203], v[196:199], v[204:207]")
    e(f"s_and_b32 {T0}, s3, 3"); e(f"s_lshl_b32 {T1}, {T0}, 11")
    e(f"v_add_u32 v20, {T1}, v14")
    e(f"ds_write_b128 v20, v[192:195] offset:{L_P}")
    e(f"ds_write_b128 v20, v[196:199] offset:{L_P+1024}")
    e(f"s_lshl_b32 {T1}, {T0}, 2")
    e("v_lshlrev_b32 v18, 4, v16"); e(f"v_add_u32 v19, {T1}, v18")
    execm("0x11",0)
    e(f"ds_write_b32 v19, v248 offset:{L_MX}")
    e(f"ds_write_b32 v19, v204 offset:{L_LS}")
    execall()
    def ml_compute(mreg,lreg):
        e(f"v_max3_f32 v{mreg}, v232, v233, v234"); e(f"v_max_f32 v{mreg}, v{mreg}, v235")
        for k in range(4): e(f"v_sub_f32 v{232+k}, v{232+k}, v{mreg}")
        for k in range(4): e(f"v_exp_f32 v{232+k}, v{232+k}")
        e(f"v_mul_f32 v{lreg}, v232, v236")
        for k in range(1,4): e(f"v_fmac_f32 v{lreg}, v{232+k}, v{236+k}")
    def ml_publish():
        e(f"v_mov_b32 v192, v241"); e(f"v_mov_b32 v193, {TAG}"); e("v_mov_b32 v194, v242"); e(f"v_mov_b32 v195, {TAG}")
        e("v_lshlrev_b32 v8, 9, v16")
        e(f"s_lshl_b32 {T1}, s48, 10"); e(f"s_lshl_b32 {T0}, s49, 4"); e(f"s_add_u32 {T1}, {T1}, {T0}"); e(f"s_add_u32 {T1}, {T1}, {WS_ML}")
        execm("0x11",0)
        store2(f"buffer_store_dwordx4 v[192:195], v8, s[40:43], {T1} offen")
        execall()
    if earlyml:
        e("v_mov_b32 v21, 1")
        e("s_waitcnt lgkmcnt(0)")
        lds_signal("v22",16,"v21")
        e("s_cmp_lg_u32 s3, 4"); e("s_cbranch_scc1 L_noeml")
        lds_wait("v22",16,lambda t: e(f"s_cmp_lt_u32 {t}, 4"))
        e(f"ds_read_b128 v[232:235], v18 offset:{L_MX}")
        e(f"ds_read_b128 v[236:239], v18 offset:{L_LS}")
        e("s_waitcnt lgkmcnt(0)")
        ml_compute(241,242)
        ml_publish()
        e("L_noeml:")
    ST("soft")
    e("s_branch L_join")
    e("L_vwave:")
    if vprio: e("s_setprio 1")
    e(f"s_lshr_b32 {T0}, s49, 3"); e(f"s_mul_i32 {T0}, {T0}, 112"); e(f"s_mul_i32 {T1}, s3, 28"); e(f"s_add_u32 {T0}, {T0}, {T1}")
    e(f"s_lshl_b32 {T1}, {T0}, 1"); e("v_lshlrev_b32 v6, 2, v1"); e(f"v_add_u32 v6, {T1}, v6")
    e("v_mov_b32 v9, 0x10000000"); e("v_cmp_gt_u32 vcc, 14, v1"); e("v_cndmask_b32 v6, v9, v6, vcc")
    e("v_lshrrev_b32 v8, 3, v1")
    e(f"v_add_u32 v4, {T0}, v8")
    e(f"s_lshl_b32 {T0}, s48, 10"); e(f"s_and_b32 {T1}, s49, 7"); e(f"s_lshl_b32 {T1}, {T1}, 7"); e(f"s_add_u32 {T0}, {T0}, {T1}")
    e("v_and_b32 v11, 7, v1"); e("v_lshlrev_b32 v12, 4, v11")
    e("v_lshl_add_u32 v4, v4, 13, v12"); e(f"v_add_u32 v4, {T0}, v4")
    e("v_add_u32 v13, 0x30000, v4"); e("v_cmp_gt_u32 vcc, 32, v1"); e("v_cndmask_b32 v13, v9, v13, vcc")
    e("v_add_u32 v5, 0x10000, v4"); e("v_add_u32 v15, 0x20000, v4")
    e("ds_write_b128 v22, v[24:27]"); e("ds_write_b128 v22, v[24:27] offset:16")
    e("s_waitcnt lgkmcnt(0)")
    srd(28,10,3670016); srd(32,4,896)
    e("buffer_load_dword v128, v6, s[32:35], 0 offen")
    e(f"buffer_load_dwordx4 v[132:135], v4, s[28:31], 0 offen{nt}")
    e(f"buffer_load_dwordx4 v[136:139], v5, s[28:31], 0 offen{nt}")
    e(f"buffer_load_dwordx4 v[140:143], v15, s[28:31], 0 offen{nt}")
    e(f"buffer_load_dwordx4 v[144:147], v13, s[28:31], 0 offen{nt}")
    e("s_barrier")
    e("s_load_dword s50, s[18:19], 0")
    common_consts()
    srd(24,8,0x2000000)
    e("s_mov_b32 s60, 0x05040100"); e("s_mov_b32 s61, 0x07060302")
    for t in range(8):
        p=((1<<t)|(1<<(4+t))) if t<4 else ((1<<(8+t-4))|(1<<(12+t-4)))
        p=p*0x00010001
        e(f"s_mov_b32 s{64+2*t}, {hex(p)}"); e(f"s_mov_b32 s{65+2*t}, {hex(p)}")
    e("v_and_b32 v9, 15, v1"); e("v_lshlrev_b32 v3, 9, v7"); e("v_lshl_add_u32 v3, v9, 4, v3")
    e("v_and_b32 v12, 1, v8"); e("v_lshlrev_b32 v12, 4, v12"); e("v_sub_u32 v12, 16, v12")
    e("v_lshlrev_b32 v8, 2, v7")
    e("v_lshlrev_b32 v11, 5, v11"); e("v_lshl_add_u32 v11, v7, 8, v11"); e(f"s_lshl_b32 {T0}, s3, 10"); e(f"v_add_u32 v11, {T0}, v11")
    e("s_waitcnt vmcnt(4)")
    for n in range(4):
        if n: e(f"v_add_u32 v9, {16*n}, v8")
        e(f"ds_bpermute_b32 v{148+n}, {'v9' if n else 'v8'}, v128")
    e("s_waitcnt lgkmcnt(0)")
    tags()
    for n in range(4):
        e(f"v_lshlrev_b32 v{148+n}, v12, v{148+n}"); e(f"v_and_b32 v{148+n}, 0xffff0000, v{148+n}")
    for n in range(4):
        e(f"s_waitcnt vmcnt({3-n})")
        for c in range(4):
            e(f"v_lshlrev_b32 v160, 16, v{132+4*n+c}"); e(f"v_and_b32 v161, 0xffff0000, v{132+4*n+c}")
            if n==0:
                e(f"v_mul_f32 v{152+2*c}, v160, v148"); e(f"v_mul_f32 v{153+2*c}, v161, v148")
            else:
                e(f"v_fmac_f32 v{152+2*c}, v160, v{148+n}"); e(f"v_fmac_f32 v{153+2*c}, v161, v{148+n}")
    for k in range(8):
        e(f"v_add_f32_dpp v{152+k}, v{152+k}, v{152+k} row_ror:8 row_mask:0xf bank_mask:0xf")
    execm("0x00ff00ff","0x00ff00ff")
    e(f"ds_write_b128 v11, v[152:155] offset:{L_QP}")
    e(f"ds_write_b128 v11, v[156:159] offset:{L_QP+16}")
    execall()
    e("v_mov_b32 v21, 1")
    e("s_waitcnt lgkmcnt(0)")
    lds_signal("v22",0,"v21")
    e("s_cmp_lg_u32 s3, 0"); e("s_cbranch_scc1 L_noq")
    e("v_lshlrev_b32 v12, 2, v1"); e("v_lshlrev_b32 v13, 3, v1")
    e(f"s_lshl_b32 {T0}, s48, 14"); e(f"s_lshr_b32 {T1}, s49, 3"); e(f"s_lshl_b32 {T1}, {T1}, 12"); e(f"s_add_u32 s60, {T0}, {T1}")
    e(f"s_and_b32 {T1}, s49, 7"); e(f"s_lshl_b32 {T1}, {T1}, 9"); e(f"s_add_u32 s60, s60, {T1}")
    lds_wait("v22",0,lambda t: e(f"s_cmp_lt_u32 {t}, 4"))
    for k in range(16): e(f"ds_read_b32 v{144+k}, v12 offset:{L_QP+256*k}")
    e(f"s_add_u32 {T1}, s60, {WS_QS}"); e(f"s_add_u32 {T0}, s60, {WS_QA}")
    e("s_mov_b32 s60, 0x05040100")
    e("s_waitcnt lgkmcnt(0)")
    for stp in (1,2,4,8):
        for k in range(0,16,2*stp): e(f"v_add_f32 v{144+k}, v{144+k}, v{144+k+stp}")
    e("v_mov_b32_dpp v146, v144 quad_perm:[1,0,3,2] row_mask:0xf bank_mask:0xf")
    e("v_mov_b32 v145, s63"); e("v_mov_b32 v147, s63")
    execm("0x55555555","0x55555555")
    if not force_slow: e(f"buffer_store_dwordx4 v[144:147], v13, s[40:43], {T0} offen")
    e(f"buffer_store_dwordx4 v[144:147], v13, s[40:43], {T1} offen sc1")
    if not kwin:
        execm(1,0)
        e("v_mov_b32 v21, 1")
        e("ds_write_b32 v22, v21 offset:4")
    execall()
    e("L_noq:")
    ST("qpub")
    e("s_barrier")
    if evenW: parity_scc()
    nv=0
    for s_ in range(2):
        for hh in range(2):
            for ee in range(8):
                of=s_*16384+ee*2048+hh*256
                r=64+64*s_+32*hh+4*ee
                throttle(nv)
                if vwin and nv>=vwin: e(f"s_waitcnt vmcnt({vwin-1})")
                nv+=1
                e(f"buffer_load_dwordx4 v[{r}:{r+3}], v3, s[24:27], s{52+of//4096} offen offset:{of%4096}{nt}")
    ST("Viss")
    e("L_join:")
    e("s_waitcnt lgkmcnt(0)")
    e("s_barrier")
    ST("P")
    e("s_cmp_lt_u32 s3, 4"); e("s_cbranch_scc1 L_vpv")
    if not earlyml:
        e("s_cmp_lg_u32 s3, 4"); e("s_cbranch_scc1 L_noml2")
        e(f"ds_read_b128 v[232:235], v18 offset:{L_MX}")
        e(f"ds_read_b128 v[236:239], v18 offset:{L_LS}")
        e("s_waitcnt lgkmcnt(0)")
        ml_compute(241,242); ml_publish()
        e("L_noml2:")
    e(f"s_lshl_b32 {T0}, s48, 9"); e(f"s_lshl_b32 {T1}, s49, 4"); e(f"s_add_u32 {T0}, {T0}, {T1}")
    e(f"s_and_b32 {T1}, s3, 3"); e(f"s_lshl_b32 {T1}, {T1}, 2"); e(f"s_add_u32 {T0}, {T0}, {T1}"); e(f"s_mul_i32 {T0}, {T0}, 896")
    e("s_mov_b32 exec_hi, 0x00ffffff")
    for n in range(4): e(f"buffer_load_dwordx4 v[{64+4*n}:{67+4*n}], v14, s[36:39], {T0} offen offset:{896*n}{nt}")
    execall()
    e("s_cmp_lg_u32 s3, 6"); e("s_cbranch_scc1 L_nopre")
    e(f"s_lshl_b32 {T0}, s48, 17"); e(f"s_lshl_b32 {T1}, s49, 12"); e(f"s_add_u32 {T0}, {T0}, {T1}"); e(f"s_add_u32 {T0}, {T0}, {WS_OB}")
    e("v_lshlrev_b32 v8, 7, v1")
    e("s_mov_b32 exec_hi, 0")
    e(f"buffer_load_dword v52, v8, s[40:43], {T0} offen sc1")
    execall()
    e("L_nopre:")
    e("s_cmp_lg_u32 s3, 5"); e("s_cbranch_scc1 L_nopre2")
    e(f"s_cmp_ge_u32 s49, {NRED}"); e("s_cbranch_scc1 L_nopre2")
    e(f"s_mul_i32 {T0}, s48, {28*4096}"); e(f"s_lshl_b32 {T1}, s49, 12"); e(f"s_add_u32 {T0}, {T0}, {T1}"); e(f"s_add_u32 {T0}, {T0}, {WS_OC}")
    e("v_lshlrev_b32 v8, 7, v1")
    e("s_mov_b32 exec_hi, 0")
    e(f"buffer_load_dword v52, v8, s[40:43], {T0} offen sc1")
    execall()
    e("L_nopre2:")
    e("s_cmp_lg_u32 s3, 7"); e("s_cbranch_scc1 L_nogp")
    e("v_bfe_u32 v8, v1, 1, 4"); e("v_lshlrev_b32 v25, 7, v8")
    e("v_lshrrev_b32 v9, 5, v1"); e("v_lshl_add_u32 v25, v9, 6, v25")
    e("v_and_b32 v9, 1, v1"); e("v_lshl_add_u32 v25, v9, 5, v25")
    e("v_lshlrev_b32 v26, 4, v8")
    e(f"s_lshl_b32 {T0}, s48, 17"); e(f"s_lshl_b32 {T1}, s49, 12"); e(f"s_add_u32 {T0}, {T0}, {T1}"); e(f"s_add_u32 s60, {T0}, {WS_OB}")
    e(f"s_lshl_b32 {T1}, s48, 1"); e(f"s_lshr_b32 {T0}, s49, 4"); e(f"s_add_u32 {T1}, {T1}, {T0}"); e(f"s_lshl_b32 {T1}, {T1}, 9"); e(f"s_add_u32 s61, {T1}, {WS_ML}")
    e("buffer_load_dwordx4 v[144:147], v26, s[40:43], s61 offen sc1")
    e("buffer_load_dwordx4 v[148:151], v26, s[40:43], s61 offen offset:256 sc1")
    e("v_lshrrev_b32 v27, 5, v1"); e("v_lshlrev_b32 v27, 5, v27"); e("v_lshl_add_u32 v27, v9, 4, v27")
    e("L_nogp:")
    e(f"s_and_b32 {T1}, s3, 3"); e(f"s_mul_i32 {T1}, {T1}, 3584"); e(f"v_add_u32 v20, {T1}, v14")
    e("s_barrier")
    e("s_cmp_eq_u32 s3, 7"); e("s_cbranch_scc1 L_wo7")
    e("s_waitcnt vmcnt(0)")
    e("s_branch L_wost")
    e("L_wo7:")
    if prio: e("s_setprio 3")
    def oload(b):
        for k_,of_ in enumerate((0,16,2048,2064)):
            e(f"buffer_load_dwordx4 v[{b+4*k_}:{b+4*k_+3}], v25, s[40:43], s60 offen offset:{of_} sc1")
    oload(128)
    e("s_waitcnt vmcnt(6)")
    e("L_wost:")
    e("s_mov_b32 exec_hi, 0x00ffffff")
    for n in range(4): e(f"ds_write_b128 v20, v[{64+4*n}:{67+4*n}] offset:{L_WO+896*n}")
    execall()
    e("v_mov_b32 v21, 1")
    e("s_waitcnt lgkmcnt(0)")
    lds_signal("v22",12,"v21")
    e("s_cmp_lg_u32 s3, 7"); e("s_cbranch_scc1 L_nob")
    e(f"s_mov_b32 {SPIN}, {spin_limit}")
    e("s_waitcnt vmcnt(4)")
    e("L_mlchk:")
    e("v_min3_u32 v152, v145, v147, v149"); e("v_max3_u32 v153, v145, v147, v149")
    e("v_min_u32 v152, v152, v151"); e("v_max_u32 v153, v153, v151")
    e(f"v_xor_b32 v152, {TAG}, v152"); e(f"v_xor_b32 v153, {TAG}, v153"); e("v_or_b32 v152, v152, v153")
    e("v_cmp_ne_u32 vcc, 0, v152")
    e("s_cbranch_vccz L_mlok")
    e(f"s_sub_u32 {SPIN}, {SPIN}, 1"); e(f"s_cmp_eq_u32 {SPIN}, 0"); e("s_cbranch_scc1 L_mlok")
    e("buffer_load_dwordx4 v[144:147], v26, s[40:43], s61 offen sc1")
    e("buffer_load_dwordx4 v[148:151], v26, s[40:43], s61 offen offset:256 sc1")
    e("s_waitcnt vmcnt(0)")
    e("s_branch L_mlchk")
    e("L_mlok:")
    def allred(op,regs_,tmps):
        for s_ in (2,4,8):
            for r in regs_: e(f"{op}_dpp v{r}, v{r}, v{r} row_ror:{s_} row_mask:0xf bank_mask:0xf")
        for r,t in zip(regs_,tmps): e(f"v_mov_b32 v{t}, v{r}")
        for r,t in zip(regs_,tmps): e(f"v_permlane16_swap_b32 v{t}, v{r}")
        for r,t in zip(regs_,tmps): e(f"{op} v{r}, v{r}, v{t}")
    e("v_max_f32 v152, v144, v148")
    allred("v_max_f32",[152],[153])
    e("v_sub_f32 v144, v144, v152"); e("v_sub_f32 v148, v148, v152")
    e("v_exp_f32 v144, v144"); e("v_exp_f32 v148, v148")
    e("v_mul_f32 v154, v144, v146"); e("v_fmac_f32 v154, v148, v150")
    allred("v_add_f32",[154],[155])
    e("v_rcp_f32 v154, v154")
    e("v_mul_f32 v144, v144, v154"); e("v_mul_f32 v148, v148, v154")
    e(f"s_mov_b32 {SPIN}, {spin_limit}")
    if stamp: e("s_mov_b32 s63, 0")
    def bcheck(b):
        e(f"v_min3_u32 v152, v{b+1}, v{b+3}, v{b+5}"); e(f"v_max3_u32 v153, v{b+1}, v{b+3}, v{b+5}")
        e(f"v_min3_u32 v152, v152, v{b+7}, v{b+9}"); e(f"v_max3_u32 v153, v153, v{b+7}, v{b+9}")
        e(f"v_min3_u32 v152, v152, v{b+11}, v{b+13}"); e(f"v_max3_u32 v153, v153, v{b+11}, v{b+13}")
        e(f"v_min_u32 v152, v152, v{b+15}"); e(f"v_max_u32 v153, v153, v{b+15}")
        for k in range(4): e(f"v_mul_f32 v{156+k}, v144, v{b+2*k}")
        e(f"v_xor_b32 v152, {TAG}, v152"); e(f"v_xor_b32 v153, {TAG}, v153"); e("v_or_b32 v152, v152, v153")
        for k in range(4): e(f"v_fmac_f32 v{156+k}, v148, v{b+8+2*k}")
        e("v_cmp_ne_u32 vcc, 0, v152")
        e("s_cbranch_vccz L_bok")
    e("L_bchk:")
    if stamp: e("s_add_u32 s63, s63, 1")
    if pipe:
        oload(164); e("s_waitcnt vmcnt(4)"); bcheck(128)
        oload(128); e("s_waitcnt vmcnt(4)"); bcheck(164)
        e(f"s_sub_u32 {SPIN}, {SPIN}, 1"); e(f"s_cmp_lg_u32 {SPIN}, 0"); e("s_cbranch_scc1 L_bchk")
    else:
        e("s_waitcnt vmcnt(0)"); bcheck(128)
        e(f"s_sub_u32 {SPIN}, {SPIN}, 1"); e(f"s_cmp_eq_u32 {SPIN}, 0"); e("s_cbranch_scc1 L_bok")
        oload(128)
        e("s_branch L_bchk")
    e("L_bok:")
    ST("Bok")
    allred("v_add_f32",[156,157,158,159],[160,161,162,163])
    e("v_cvt_pk_bf16_f32 v160, v156, v157"); e("v_cvt_pk_bf16_f32 v161, v158, v159")
    e("v_lshlrev_b32 v156, 16, v160"); e("v_and_b32 v157, 0xffff0000, v160")
    e("v_lshlrev_b32 v158, 16, v161"); e("v_and_b32 v159, 0xffff0000, v161")
    execm(3,3)
    e(f"ds_write_b128 v27, v[156:159] offset:{L_OV}")
    execall()
    e("s_branch L_nob")
    e("L_vpv:")
    e("v_lshlrev_b32 v18, 4, v16")
    e(f"ds_read_b128 v[232:235], v18 offset:{L_MX}")
    e(f"ds_read_b128 v[236:239], v18 offset:{L_LS}")
    e("ds_read_b32 v240, v22 offset:8")
    e(f"s_lshl_b32 {T1}, s3, 11"); e("v_lshlrev_b32 v20, 4, v1"); e(f"v_add_u32 v20, {T1}, v20")
    e(f"ds_read_b128 v[192:195], v20 offset:{L_P}")
    e(f"ds_read_b128 v[196:199], v20 offset:{L_P+1024}")
    e("s_waitcnt lgkmcnt(0)")
    e("v_readfirstlane_b32 s62, v240"); e("s_lshr_b32 s62, s62, 8")
    ml_compute(241,242)
    e("v_lshlrev_b32 v23, 16, v16")
    e("v_lshl_add_u32 v23, v7, 13, v23")
    e("v_bfe_u32 v8, v1, 3, 1"); e("v_lshl_add_u32 v23, v8, 5, v23")
    e("v_and_b32 v8, 2, v1"); e("v_lshl_add_u32 v23, v8, 3, v23")
    e("v_and_b32 v8, 1, v1"); e("v_lshl_add_u32 v23, v8, 6, v23")
    e("v_lshlrev_b32 v21, 2, v1")
    e(f"s_lshl_b32 {T1}, s3, 9"); e(f"v_add_u32 v24, {T1}, v21")
    e(f"s_lshl_b32 {T1}, s3, 11"); e(f"v_add_u32 v25, {T1}, v21")
    def mask(s_):
        for t in range(8):
            for u in range(4):
                e(f"v_cndmask_b32 v{200+4*t+u}, 0, v{192+4*s_+u}, s[{64+2*t}:{65+2*t}]")
    def pv(s_,hh,first):
        acc=244+4*hh
        base=64+64*s_+32*hh
        for c in range(4):
            tb=(36 if c%2==0 else 44)
            for u in range(4):
                e(f"v_perm_b32 v{tb+u}, v{base+4*(2*u+1)+c}, v{base+4*(2*u)+c}, s60")
            for u in range(4):
                e(f"v_perm_b32 v{tb+4+u}, v{base+4*(2*u+1)+c}, v{base+4*(2*u)+c}, s61")
            for par in range(2):
                t=2*c+par
                C="0" if (first and c==0 and par==0) else f"v[{acc}:{acc+3}]"
                e(f"v_mfma_f32_16x16x32_bf16 v[{acc}:{acc+3}], v[{tb+4*par}:{tb+4*par+3}], v[{200+4*t}:{203+4*t}], {C}")
    mask(0)
    e("s_waitcnt vmcnt(24)"); pv(0,0,True)
    e("s_waitcnt vmcnt(16)"); pv(0,1,True)
    mask(1)
    e("s_waitcnt vmcnt(8)"); pv(1,0,False)
    for r in range(4): e(f"ds_write_b32 v25, v{244+r} offset:{L_OR+r*256}")
    e(f"s_lshl_b32 {T0}, s48, 17"); e(f"s_lshl_b32 {T1}, s49, 7"); e(f"s_add_u32 {T0}, {T0}, {T1}"); e(f"s_add_u32 {T0}, {T0}, {WS_OB}")
    e(f"s_bfe_u32 {T1}, s3, 0x10001"); e(f"s_lshl_b32 {T1}, {T1}, 15"); e(f"s_add_u32 {T0}, {T0}, {T1}")
    e(f"s_and_b32 {T1}, s3, 1"); e(f"s_lshl_b32 {T1}, {T1}, 12"); e(f"s_add_u32 {T0}, {T0}, {T1}")
    e(f"v_mov_b32 v197, {TAG}"); e(f"v_mov_b32 v199, {TAG}")
    if prio: e("s_setprio 2")
    e("s_waitcnt vmcnt(0)")
    ST("V1done")
    pv(1,1,False)
    e("s_mov_b32 s64, 0x55555555"); e("s_mov_b32 s65, 0x55555555")
    for r in range(4): e(f"ds_write_b32 v25, v{248+r} offset:{L_OR+1024+r*256}")
    e("s_waitcnt lgkmcnt(0)")
    e("s_barrier")
    for k in range(4): e(f"ds_read_b32 v{192+k}, v24 offset:{L_OR+2048*k}")
    for k in range(4): e(f"ds_read_b32 v{200+k}, v24 offset:{L_OR+2048*k+256}")
    e("s_waitcnt lgkmcnt(0)")
    e("v_mul_f32 v252, v192, v232"); e("v_mul_f32 v254, v200, v232")
    for k in range(1,4): e(f"v_fmac_f32 v252, v{192+k}, v{232+k}"); e(f"v_fmac_f32 v254, v{200+k}, v{232+k}")
    e("v_mov_b32_dpp v192, v252 quad_perm:[1,0,3,2] row_mask:0xf bank_mask:0xf")
    e("v_mov_b32_dpp v193, v254 quad_perm:[1,0,3,2] row_mask:0xf bank_mask:0xf")
    e("v_cndmask_b32 v196, v193, v252, s[64:65]")
    e("v_cndmask_b32 v198, v254, v192, s[64:65]")
    store2(f"buffer_store_dwordx4 v[196:199], v23, s[40:43], {T0} offen")
    ST("pub")
    if prio: e("s_setprio 0")
    e("L_nob:")
    e("v_lshrrev_b32 v20, 5, v1"); e("v_mul_u32_u24 v20, 7168, v20"); e("v_and_b32 v8, 31, v1"); e("v_lshl_add_u32 v20, v8, 2, v20")
    e(f"s_lshl_b32 {T1}, s3, 7"); e(f"v_add_u32 v20, {T1}, v20")
    e("s_cmp_eq_u32 s3, 7"); e("s_cbranch_scc1 L_nowr")
    lds_wait("v22",12,lambda t: e(f"s_cmp_lt_u32 {t}, 4"))
    for r8 in range(8): e(f"ds_read_b32 v{28+r8}, v20 offset:{L_WO+896*r8}")
    e("v_lshrrev_b32 v27, 3, v1"); e("v_lshlrev_b32 v27, 12, v27")
    e("v_and_b32 v9, 7, v1"); e("v_lshl_add_u32 v27, v9, 4, v27")
    e(f"s_mul_i32 {T0}, s48, {28*4096}"); e(f"s_lshl_b32 {T1}, s3, 14"); e(f"s_add_u32 {T0}, {T0}, {T1}"); e(f"s_lshl_b32 {T1}, s49, 7"); e(f"s_add_u32 {T0}, {T0}, {T1}"); e(f"s_add_u32 {T0}, {T0}, {WS_OC}")
    e(f"v_mov_b32 v105, {TAG}"); e(f"v_mov_b32 v107, {TAG}")
    e("s_waitcnt lgkmcnt(0)")
    for r8 in range(8):
        e(f"v_lshlrev_b32 v{36+2*r8}, 16, v{28+r8}"); e(f"v_and_b32 v{37+2*r8}, 0xffff0000, v{28+r8}")
    e("L_nowr:")
    e("v_lshrrev_b32 v8, 5, v1"); e("v_lshlrev_b32 v8, 5, v8")
    e(f"s_mul_i32 s60, s48, {28*4096}"); e(f"s_lshl_b32 {T1}, s49, 12"); e(f"s_add_u32 s60, s60, {T1}"); e(f"s_add_u32 s60, s60, {WS_OC}")
    e("v_lshlrev_b32 v14, 4, v1")
    e("s_waitcnt lgkmcnt(0)")
    e("s_barrier")
    ST("B5")
    e("s_cmp_eq_u32 s3, 7"); e("s_cbranch_scc1 L_stageC")
    if prio2: e("s_setprio 2")
    e(f"ds_read_b128 v[96:99], v8 offset:{L_OV}")
    e(f"ds_read_b128 v[100:103], v8 offset:{L_OV+16}")
    e("s_waitcnt lgkmcnt(1)")
    e("v_mul_f32 v104, v96, v36"); e("v_mul_f32 v106, v96, v37")
    e("v_mul_f32 v108, v97, v38"); e("v_mul_f32 v109, v97, v39")
    e("v_fmac_f32 v104, v98, v40"); e("v_fmac_f32 v106, v98, v41")
    e("v_fmac_f32 v108, v99, v42"); e("v_fmac_f32 v109, v99, v43")
    e("s_waitcnt lgkmcnt(0)")
    e("v_fmac_f32 v104, v100, v44"); e("v_fmac_f32 v106, v100, v45")
    e("v_fmac_f32 v108, v101, v46"); e("v_fmac_f32 v109, v101, v47")
    e("v_fmac_f32 v104, v102, v48"); e("v_fmac_f32 v106, v102, v49")
    e("v_fmac_f32 v108, v103, v50"); e("v_fmac_f32 v109, v103, v51")
    e("v_add_f32 v104, v104, v108"); e("v_add_f32 v106, v106, v109")
    e("v_mov_b32 v108, v104"); e("v_mov_b32 v109, v106")
    e("v_permlane32_swap_b32 v108, v104"); e("v_permlane32_swap_b32 v109, v106")
    e("v_add_f32 v104, v104, v108"); e("v_add_f32 v106, v106, v109")
    e("s_mov_b32 exec_hi, 0")
    store2(f"buffer_store_dwordx4 v[104:107], v27, s[40:43], {T0} offen")
    ST("Cpub")
    e("s_branch L_end")
    e("L_stageC:")
    e(f"s_cmp_ge_u32 s49, {NRED}"); e("s_cbranch_scc1 L_end")
    e(f"s_mov_b32 {SPIN}, {spin_limit}")
    e(f"s_lshl_b32 s61, s49, 10"); e(f"s_add_u32 s61, s61, {WS_OD}")
    e(f"s_lshl_b32 {T1}, s48, 7"); e(f"s_add_u32 {T1}, {T1}, s61")
    e(f"v_mov_b32 v105, {TAG}"); e(f"v_mov_b32 v107, {TAG}")
    def cload(b):
        for n in range(4): e(f"buffer_load_dwordx4 v[{b+4*n}:{b+4*n+3}], v14, s[40:43], s60 offen offset:{1024*n} sc1")
    def ccheck(b):
        e(f"v_min3_u32 v96, v{b+1}, v{b+3}, v{b+5}"); e(f"v_max3_u32 v97, v{b+1}, v{b+3}, v{b+5}")
        e(f"v_add_f32 v104, v{b}, v{b+4}"); e(f"v_add_f32 v106, v{b+2}, v{b+6}")
        e(f"v_min3_u32 v96, v96, v{b+7}, v{b+9}"); e(f"v_max3_u32 v97, v97, v{b+7}, v{b+9}")
        e(f"v_add_f32 v108, v{b+8}, v{b+12}"); e(f"v_add_f32 v109, v{b+10}, v{b+14}")
        e(f"v_min3_u32 v96, v96, v{b+11}, v{b+13}"); e(f"v_max3_u32 v97, v97, v{b+11}, v{b+13}")
        e("v_add_f32 v104, v104, v108"); e("v_add_f32 v106, v106, v109")
        e(f"v_min_u32 v96, v96, v{b+15}"); e(f"v_max_u32 v97, v97, v{b+15}")
        e(f"v_xor_b32 v96, {TAG}, v96"); e(f"v_xor_b32 v97, {TAG}, v97"); e("v_or_b32 v96, v96, v97")
        e("v_add_f32_dpp v104, v104, v104 row_ror:8 row_mask:0xf bank_mask:0xf")
        e("v_add_f32_dpp v106, v106, v106 row_ror:8 row_mask:0xf bank_mask:0xf")
        e("v_cmp_ne_u32 vcc, 0, v96")
        e("s_cbranch_vccz L_cok")
    if pipe:
        cload(128)
        e("L_cpoll:")
        cload(164); e("s_waitcnt vmcnt(4)"); ccheck(128)
        cload(128); e("s_waitcnt vmcnt(4)"); ccheck(164)
    else:
        e("L_cpoll:")
        cload(128); e("s_waitcnt vmcnt(0)"); ccheck(128)
    e(f"s_sub_u32 {SPIN}, {SPIN}, 1"); e(f"s_cmp_lg_u32 {SPIN}, 0"); e("s_cbranch_scc1 L_cpoll")
    e("L_cok:")
    ST("Cok")
    def red1632(a,b):
        for sw in ("16","32"):
            e(f"v_mov_b32 v96, v{a}"); e(f"v_mov_b32 v97, v{b}")
            e(f"v_permlane{sw}_swap_b32 v96, v{a}"); e(f"v_permlane{sw}_swap_b32 v97, v{b}")
            e(f"v_add_f32 v{a}, v{a}, v96"); e(f"v_add_f32 v{b}, v{b}, v97")
    red1632(104,106)
    execm("0xff",0)
    e(f"buffer_store_dwordx4 v[104:107], v14, s[40:43], {T1} offen sc1")
    execall()
    e(f"s_and_b32 {T1}, s49, 7"); e(f"s_cmp_lg_u32 {T1}, s48"); e("s_cbranch_scc1 L_end")
    e(f"s_mov_b32 {SPIN}, {spin_limit}")
    def dload(b): e(f"buffer_load_dwordx4 v[{b}:{b+3}], v14, s[40:43], s61 offen sc1")
    def dcheck(b):
        e(f"v_xor_b32 v96, {TAG}, v{b+1}"); e(f"v_xor_b32 v97, {TAG}, v{b+3}"); e("v_or_b32 v96, v96, v97")
        e(f"v_add_f32_dpp v112, v{b}, v{b} row_ror:8 row_mask:0xf bank_mask:0xf")
        e(f"v_add_f32_dpp v113, v{b+2}, v{b+2} row_ror:8 row_mask:0xf bank_mask:0xf")
        e("v_cmp_ne_u32 vcc, 0, v96")
        e("s_cbranch_vccz L_dok")
    if pipe:
        dload(180)
        e("L_dpoll:")
        dload(184); e("s_waitcnt vmcnt(1)"); dcheck(180)
        dload(180); e("s_waitcnt vmcnt(1)"); dcheck(184)
    else:
        e("L_dpoll:")
        dload(180); e("s_waitcnt vmcnt(0)"); dcheck(180)
    e(f"s_sub_u32 {SPIN}, {SPIN}, 1"); e(f"s_cmp_lg_u32 {SPIN}, 0"); e("s_cbranch_scc1 L_dpoll")
    e("L_dok:")
    ST("Dok")
    red1632(112,113)
    e("v_cvt_pk_bf16_f32 v98, v112, v113")
    e(f"s_lshl_b32 {T1}, s49, 5")
    e("v_lshlrev_b32 v99, 2, v1")
    execm("0xff",0)
    e(f"buffer_store_dword v98, v99, s[44:47], {T1} offen")
    e("s_cmp_lg_u32 s49, 0"); e("s_cbranch_scc1 L_end")
    e("s_mov_b32 exec_lo, 1")
    e("v_mov_b32 v100, s50"); e("v_mov_b32 v101, 0")
    e("buffer_store_dword v100, v101, s[40:43], 0 offen sc1")
    e("L_end:")
    if stamp:
        ST("end")
        n=nst[0]
        execall()
        e("s_waitcnt lgkmcnt(0)")
        e(f"s_lshl_b32 {T0}, s2, 3"); e(f"s_add_u32 {T0}, {T0}, s3"); e(f"s_lshl_b32 {T0}, {T0}, 6"); e(f"s_add_u32 {T0}, {T0}, {WS_STAMP}")
        for i in range(16):
            e(f"v_mov_b32 v{96+i}, s{SREG(i)}" if i<n else (f"v_mov_b32 v{96+i}, s63" if i==15 else f"v_mov_b32 v{96+i}, 0"))
        e("v_mov_b32 v112, 0")
        execm(1,0)
        for q in range(4):
            e(f"buffer_store_dwordx4 v[{96+4*q}:{99+4*q}], v112, s[40:43], {T0} offen offset:{16*q}")
    e("L_done:"); e("s_endpgm")
    e('.section .rodata,"a"'); e(".p2align 6"); e(f".amdhsa_kernel {NAME}")
    e("  .amdhsa_next_free_vgpr 256"); e(f"  .amdhsa_next_free_sgpr 102"); e("  .amdhsa_accum_offset 256")
    e("  .amdhsa_group_segment_fixed_size 0"); e("  .amdhsa_kernarg_size 64"); e("  .amdhsa_user_sgpr_count 2")
    e("  .amdhsa_user_sgpr_kernarg_segment_ptr 1"); e("  .amdhsa_system_sgpr_workgroup_id_x 1"); e(".end_amdhsa_kernel")
    if stamp: open("stampnames.txt","w").write(",".join(names))
    return "\n".join(pad(o,verbose=True))+"\n"

STAMPS=["entry","Kiss","qrdy","soft","qpub","Viss","P","V1done","pub","Bok","B5","Cpub","Cok","Dok","end"]
if __name__=="__main__":
    from build import build
    def mk(nm,**kw):
        open(nm+".s","w").write(gen(**kw)); build(nm+".s",nm+".co")
    mk("k18"); mk("k18slow",force_slow=True); mk("k19a",prio2=True); mk("k19b",vprio=True)
```

```python
import sys, struct
from asmlib import pad

NAME="standalone__gqa_block_cached__decode_kernel"
def f32hex(x): return "0x%08x"%struct.unpack("<I",struct.pack("<f",x))[0]

WS_EPOCH=0
WS_ML=0x6000
WS_QA=0x40000
WS_QS=0x60000
WS_OB=0x100000
WS_OC=0x200000
WS_OD=0x300000
WS_STAMP=0x400000
WS_SIZE=0x800000
NRED=28
L_CNT=1024
L_MX=1088
L_LS=1152
L_OV=1216
L_RC=1280
L_P=2048
L_OR=10240
L_QB=18432
L_WO=19456
L_QP=19456+14336
L_TOTAL=19456+14336+4096

DOC = """
Fused GQA decode: q-projection, split-K attention, out-projection in one launch (256 workgroups, one per CU).
Workgroup wg: g = wg&7 (kv head, 2 q heads), j = wg>>3 (256 keys).  Waves 0-3 = V waves, waves 4-7 = K waves.
  V waves: 64-column x 112-row slice of x@wq -> {f32,tag} granules in d_ws; later stream V, P@V (MFMA), publish O partials.
  K waves: stream K, gather q (sum of 4 partials, bf16), QK^T (MFMA), softmax with the wave's true max, P -> LDS.
  Hand-offs carry a launch tag (epoch word of d_ws + 1) in every 8-byte granule.  Plain stores are used only when all 32
  producers of a group report the same XCC id as the consumer (same L2); otherwise write-through (sc1) stores.
  Stage B: workgroup (g,j) combines 16 rows of o over the 32 splits and applies its 16 rows of wo.
  Stage C1: column sums over the group, stage C2: sum over the 8 groups -> out.
"""
def SREG(i): return 80+2*i if i<10 else 4+2*(i-10)
T0,T1="s0","s1"
SPIN="s100"; CC="s101"
TAG="s51"

def gen(stamp=None, nt=" nt", spin_limit=1000000, force_slow=False, k0=5, k1=12, evenW=0, earlyml=True, cspec=True, kwin=10, vwin=0, pipe=True):
    o=[]; e=o.append
    nst=[0]; names=[]
    def ST(name):
        if stamp and (name in stamp):
            if name in names: i=names.index(name)
            else:
                i=nst[0]; nst[0]+=1; names.append(name)
            r=SREG(i); e(f"s_memrealtime s[{r}:{r+1}]")
    def srd(d,lo,size):
        e(f"s_mov_b32 s{d}, s{lo}"); e(f"s_mov_b32 s{d+1}, s{lo+1}"); e(f"s_mov_b32 s{d+2}, {size}"); e(f"s_mov_b32 s{d+3}, 0x20000")
    def execm(lo,hi):
        e(f"s_mov_b32 exec_lo, {lo}"); e(f"s_mov_b32 exec_hi, {hi}")
    def execall(): e("s_mov_b64 exec, -1")
    lab=[0]
    def lds_wait(addr_v, off, cond, tmp_v="v21", tmp_s="s0"):
        lab[0]+=1; L=f"L_w{lab[0]}"
        e(f"s_mov_b32 {SPIN}, {spin_limit}")
        e(f"{L}:")
        e(f"ds_read_b32 {tmp_v}, {addr_v} offset:{off}")
        e("s_waitcnt lgkmcnt(0)")
        e(f"v_readfirstlane_b32 {tmp_s}, {tmp_v}")
        e(f"s_sub_u32 {SPIN}, {SPIN}, 1"); e(f"s_cmp_eq_u32 {SPIN}, 0"); e(f"s_cbranch_scc1 {L}x")
        cond(tmp_s)
        e(f"s_cbranch_scc1 {L}")
        e(f"{L}x:")
    def lds_signal(addr_v, off, val_v):
        execm(1,0); e(f"ds_add_u32 {addr_v}, {val_v} offset:{off}"); execall()
    thr=[0]
    def parity_scc():
        e("s_getreg_b32 s0, hwreg(HW_REG_XCC_ID)"); e("s_and_b32 s0, s0, 1"); e("s_cmp_eq_u32 s0, 0")
    def throttle(n_issued):
        if evenW and n_issued>=evenW:
            thr[0]+=1
            e(f"s_cbranch_scc0 L_thr{thr[0]}"); e(f"s_waitcnt vmcnt({evenW-1})"); e(f"L_thr{thr[0]}:")
    def store2(ins_plain):
        lab[0]+=1; L=f"L_s{lab[0]}"
        e("s_cmp_lg_u32 s62, 0"); e(f"s_cbranch_scc1 {L}a")
        e(ins_plain); e(f"s_branch {L}b")
        e(f"{L}a:"); e(ins_plain+" sc1"); e(f"{L}b:")

    hdr=open("standalone__gqa_block_cached__decode.s.ref").read().split("\n")
    for l in hdr:
        if l.startswith("; Kernarg") or l.startswith(";   offset"): e(l)
    e(f"; @launch grid=(256,1,1) block=(512,1,1) lds={L_TOTAL}")
    for l in DOC.strip("\n").split("\n"): e("; "+l)
    e('.amdgcn_target "amdgcn-amd-amdhsa--gfx950"')
    e(".text"); e(f".globl {NAME}"); e(".p2align 8"); e(f".type {NAME},@function"); e(f"{NAME}:")
    ST("entry")
    e("s_cmp_ge_u32 s2, 256"); e("s_cbranch_scc1 L_done")
    e("s_load_dwordx16 s[4:19], s[0:1], 0")
    e("v_and_b32 v1, 63, v0")
    e("v_lshrrev_b32 v2, 6, v0")
    e("s_and_b32 s48, s2, 7")
    e("s_lshr_b32 s49, s2, 3")
    e("v_readfirstlane_b32 s3, v2")
    e("v_lshrrev_b32 v7, 4, v1")
    e("v_and_b32 v10, 3, v1")
    e("v_bfe_u32 v16, v1, 2, 1")
    e("s_lshl_b32 s52, s48, 22"); e(f"s_lshl_b32 {T0}, s49, 17"); e(f"s_add_u32 s52, s52, {T0}")
    e(f"s_and_b32 {T0}, s3, 3"); e(f"s_lshl_b32 {T0}, {T0}, 15"); e(f"s_add_u32 s52, s52, {T0}")
    for i in range(1,8): e(f"s_add_u32 s{52+i}, s52, {4096*i}")
    e(f"v_mov_b32 v22, {L_CNT}")
    e("v_lshlrev_b32 v14, 4, v1")
    for i in range(24,28): e(f"v_mov_b32 v{i}, 0")
    e("s_cmp_lt_u32 s3, 4"); e("s_cbranch_scc1 L_vwave")
    def common_consts():
        e("s_getreg_b32 s62, hwreg(HW_REG_XCC_ID)"); e("s_and_b32 s62, s62, 7")
        srd(36,12,3670016); srd(40,18,WS_SIZE); srd(44,14,896)
        e(f"s_mov_b32 {CC}, {f32hex(1.4426950408889634/16)}")
    def tags():
        e("s_add_u32 s50, s50, 1"); e(f"s_xor_b32 {TAG}, s50, 0x0a3c96e1"); e(f"s_lshl_b32 {TAG}, {TAG}, 3"); e(f"s_or_b32 s63, {TAG}, s62")
    e("v_lshlrev_b32 v2, 6, v7")
    e("v_bfe_u32 v8, v1, 2, 2")
    e("v_lshl_add_u32 v2, v8, 9, v2")
    e("v_lshl_add_u32 v2, v10, 4, v2")
    e("s_waitcnt lgkmcnt(0)")
    srd(20,6,0x2000000)
    def kload(n):
        of=(n//2)*2048+(n%2)*256
        e(f"buffer_load_dwordx4 v[{64+4*n}:{67+4*n}], v2, s[20:23], s{52+of//4096} offen offset:{of%4096}{nt}")
    for n in range(k0): kload(n)
    e("s_barrier")
    if kwin:
        for n in range(k0,kwin): kload(n)
        e("s_load_dword s50, s[18:19], 0")
        common_consts()
        for n in range(kwin,32):
            e(f"s_waitcnt vmcnt({kwin-1})"); kload(n)
        e("s_waitcnt lgkmcnt(0)")
    else:
        for n in range(k0,k1): kload(n)
        e("s_load_dword s50, s[18:19], 0")
        common_consts()
        lds_wait("v22",4,lambda t: e(f"s_cmp_eq_u32 {t}, 0"))
        if evenW: parity_scc()
        for n in range(k1,32):
            throttle(n); kload(n)
    tags()
    e(f"s_lshl_b32 {T0}, s48, 14"); e(f"s_and_b32 {T1}, s3, 3"); e(f"s_lshl_b32 {T1}, {T1}, 10"); e(f"s_add_u32 {T0}, {T0}, {T1}"); e(f"s_add_u32 s98, {T0}, {WS_QA}" if not stamp else f"s_add_u32 s47, {T0}, {WS_QA}")
    GB="s98" if not stamp else "s47"
    e("v_add_u32 v15, 4096, v14"); e("v_add_u32 v17, 0x2000, v14"); e("v_add_u32 v18, 0x3000, v14")
    def gload():
        for p_,va in enumerate(("v14","v15","v17","v18")):
            e(f"buffer_load_dwordx4 v[{192+4*p_}:{195+4*p_}], {va}, s[40:43], {GB} offen sc1")
    gload()
    ST("Kiss")
    e("s_barrier")
    e(f"s_mov_b32 {SPIN}, {spin_limit}")
    e("s_waitcnt vmcnt(0)")
    e("L_qchk:")
    for i in range(8): e(f"v_xor_b32 v{208+i}, s63, v{193+2*i}")
    e("v_or3_b32 v208, v208, v209, v210"); e("v_or3_b32 v211, v211, v212, v213"); e("v_or3_b32 v208, v208, v214, v215"); e("v_or_b32 v208, v208, v211")
    e("v_cmp_le_u32 vcc, 8, v208")
    e("s_cbranch_vccz L_qok")
    e(f"s_sub_u32 {SPIN}, {SPIN}, 1"); e(f"s_cmp_eq_u32 {SPIN}, 0"); e("s_cbranch_scc1 L_qok")
    e(f"s_xor_b32 {GB}, {GB}, {WS_QA^WS_QS}")
    e("s_setprio 3")
    gload()
    e("s_setprio 0")
    e("s_waitcnt vmcnt(0)")
    e("s_branch L_qchk")
    e("L_qok:")
    if stamp: e(f"s_sub_u32 s63, {spin_limit}, {SPIN}"); e("s_mov_b32 s47, 0x20000")
    e("v_cmp_ne_u32 vcc, 0, v208")
    e("v_add_f32 v192, v192, v196"); e("v_add_f32 v194, v194, v198"); e("v_add_f32 v200, v200, v204"); e("v_add_f32 v202, v202, v206")
    e("v_add_f32 v192, v192, v200"); e("v_add_f32 v194, v194, v202")
    e("s_cmp_lg_u64 vcc, 0"); e("s_cselect_b32 s1, 0x101, 1")
    if force_slow: e("s_mov_b32 s1, 0x101")
    e("v_cvt_pk_bf16_f32 v192, v192, v194")
    e("s_and_b32 s0, s3, 3"); e("s_lshl_b32 s0, s0, 8")
    e("v_lshlrev_b32 v15, 2, v1"); e("v_add_u32 v15, s0, v15")
    e(f"ds_write_b32 v15, v192 offset:{L_QB}")
    e("v_mov_b32 v21, s1")
    e("v_lshlrev_b32 v17, 9, v16"); e("v_lshl_add_u32 v17, v7, 6, v17"); e("v_lshl_add_u32 v17, v10, 4, v17")
    e("s_waitcnt lgkmcnt(0)")
    lds_signal("v22",8,"v21")
    def c_q(t): e(f"s_and_b32 s1, {t}, 0xff"); e("s_cmp_lt_u32 s1, 4")
    lds_wait("v22",8,c_q,tmp_s="s62")
    e("s_lshr_b32 s62, s62, 8")
    e(f"ds_read_b128 v[224:227], v17 offset:{L_QB}")
    e(f"ds_read_b128 v[228:231], v17 offset:{L_QB+256}")
    e("s_waitcnt lgkmcnt(0)")
    ST("qrdy")
    for bt in range(2):
        for n in range(8):
            t=8*bt+n
            e(f"v_mfma_f32_16x16x32_bf16 v[{192+4*n}:{195+4*n}], v[{64+8*t}:{67+8*t}], v[224:227], 0")
        for n in range(8):
            t=8*bt+n
            e(f"v_mfma_f32_16x16x32_bf16 v[{192+4*n}:{195+4*n}], v[{68+8*t}:{71+8*t}], v[228:231], v[{192+4*n}:{195+4*n}]")
        for n in range(8):
            e(f"v_mov_b32_dpp v{232+8*bt+n}, v{192+4*n} quad_perm:[0,0,0,0] row_mask:0xf bank_mask:0xf")
        for r in (1,2,3):
            for n in range(8):
                e(f"v_add_f32_dpp v{232+8*bt+n}, v{192+4*n+r}, v{232+8*bt+n} quad_perm:[{r},{r},{r},{r}] row_mask:0xf bank_mask:0xf")
    e("v_max3_f32 v248, v232, v233, v234")
    for k in range(235,247,2): e(f"v_max3_f32 v248, v248, v{k}, v{k+1}")
    e("v_max_f32 v248, v248, v247")
    e("v_mov_b32 v249, v248"); e("v_permlane16_swap_b32 v249, v248"); e("v_max_f32 v248, v248, v249")
    e("v_mov_b32 v249, v248"); e("v_permlane32_swap_b32 v249, v248"); e("v_max_f32 v248, v248, v249")
    e(f"v_mul_f32 v248, {CC}, v248")
    for n in range(16): e(f"v_fma_f32 v{232+n}, v{232+n}, {CC}, -v248")
    for n in range(16): e(f"v_exp_f32 v{232+n}, v{232+n}")
    for u in range(8): e(f"v_cvt_pk_bf16_f32 v{192+u}, v{232+2*u}, v{233+2*u}")
    for u in range(4): e(f"v_mov_b32 v{200+u}, 0x3f803f80")
    e("v_mfma_f32_16x16x32_bf16 v[204:207], v[200:203], v[192:195], 0")
    e("v_mfma_f32_16x16x32_bf16 v[204:207], v[200:203], v[196:199], v[204:207]")
    e(f"s_and_b32 {T0}, s3, 3"); e(f"s_lshl_b32 {T1}, {T0}, 11")
    e(f"v_add_u32 v20, {T1}, v14")
    e(f"ds_write_b128 v20, v[192:195] offset:{L_P}")
    e(f"ds_write_b128 v20, v[196:199] offset:{L_P+1024}")
    e(f"s_lshl_b32 {T1}, {T0}, 2")
    e("v_lshlrev_b32 v18, 4, v16"); e(f"v_add_u32 v19, {T1}, v18")
    execm("0x11",0)
    e(f"ds_write_b32 v19, v248 offset:{L_MX}")
    e(f"ds_write_b32 v19, v204 offset:{L_LS}")
    execall()
    def ml_compute(mreg,lreg):
        e(f"v_max3_f32 v{mreg}, v232, v233, v234"); e(f"v_max_f32 v{mreg}, v{mreg}, v235")
        for k in range(4): e(f"v_sub_f32 v{232+k}, v{232+k}, v{mreg}")
        for k in range(4): e(f"v_exp_f32 v{232+k}, v{232+k}")
        e(f"v_mul_f32 v{lreg}, v232, v236")
        for k in range(1,4): e(f"v_fmac_f32 v{lreg}, v{232+k}, v{236+k}")
    def ml_publish():
        e(f"v_mov_b32 v192, v241"); e(f"v_mov_b32 v193, {TAG}"); e("v_mov_b32 v194, v242"); e(f"v_mov_b32 v195, {TAG}")
        e("v_lshlrev_b32 v8, 9, v16")
        e(f"s_lshl_b32 {T1}, s48, 10"); e(f"s_lshl_b32 {T0}, s49, 4"); e(f"s_add_u32 {T1}, {T1}, {T0}"); e(f"s_add_u32 {T1}, {T1}, {WS_ML}")
        execm("0x11",0)
        store2(f"buffer_store_dwordx4 v[192:195], v8, s[40:43], {T1} offen")
        execall()
    if earlyml:
        e("v_mov_b32 v21, 1")
        e("s_waitcnt lgkmcnt(0)")
        lds_signal("v22",16,"v21")
        e("s_cmp_lg_u32 s3, 4"); e("s_cbranch_scc1 L_noeml")
        lds_wait("v22",16,lambda t: e(f"s_cmp_lt_u32 {t}, 4"))
        e(f"ds_read_b128 v[232:235], v18 offset:{L_MX}")
        e(f"ds_read_b128 v[236:239], v18 offset:{L_LS}")
        e("s_waitcnt lgkmcnt(0)")
        ml_compute(241,242)
        ml_publish()
        e("L_noeml:")
    ST("soft")
    e("s_branch L_join")
    e("L_vwave:")
    e(f"s_lshr_b32 {T0}, s49, 3"); e(f"s_mul_i32 {T0}, {T0}, 112"); e(f"s_mul_i32 {T1}, s3, 28"); e(f"s_add_u32 {T0}, {T0}, {T1}")
    e(f"s_lshl_b32 {T1}, {T0}, 1"); e("v_lshlrev_b32 v6, 2, v1"); e(f"v_add_u32 v6, {T1}, v6")
    e("v_mov_b32 v9, 0x10000000"); e("v_cmp_gt_u32 vcc, 14, v1"); e("v_cndmask_b32 v6, v9, v6, vcc")
    e("v_lshrrev_b32 v8, 3, v1")
    e(f"v_add_u32 v4, {T0}, v8")
    e(f"s_lshl_b32 {T0}, s48, 10"); e(f"s_and_b32 {T1}, s49, 7"); e(f"s_lshl_b32 {T1}, {T1}, 7"); e(f"s_add_u32 {T0}, {T0}, {T1}")
    e("v_and_b32 v11, 7, v1"); e("v_lshlrev_b32 v12, 4, v11")
    e("v_lshl_add_u32 v4, v4, 13, v12"); e(f"v_add_u32 v4, {T0}, v4")
    e("v_add_u32 v13, 0x30000, v4"); e("v_cmp_gt_u32 vcc, 32, v1"); e("v_cndmask_b32 v13, v9, v13, vcc")
    e("v_add_u32 v5, 0x10000, v4"); e("v_add_u32 v15, 0x20000, v4")
    e("ds_write_b128 v22, v[24:27]"); e("ds_write_b128 v22, v[24:27] offset:16")
    e("s_waitcnt lgkmcnt(0)")
    srd(28,10,3670016); srd(32,4,896)
    e("buffer_load_dword v128, v6, s[32:35], 0 offen")
    e(f"buffer_load_dwordx4 v[132:135], v4, s[28:31], 0 offen{nt}")
    e(f"buffer_load_dwordx4 v[136:139], v5, s[28:31], 0 offen{nt}")
    e(f"buffer_load_dwordx4 v[140:143], v15, s[28:31], 0 offen{nt}")
    e(f"buffer_load_dwordx4 v[144:147], v13, s[28:31], 0 offen{nt}")
    e("s_barrier")
    e("s_load_dword s50, s[18:19], 0")
    common_consts()
    srd(24,8,0x2000000)
    e("s_mov_b32 s60, 0x05040100"); e("s_mov_b32 s61, 0x07060302")
    for t in range(8):
        p=((1<<t)|(1<<(4+t))) if t<4 else ((1<<(8+t-4))|(1<<(12+t-4)))
        p=p*0x00010001
        e(f"s_mov_b32 s{64+2*t}, {hex(p)}"); e(f"s_mov_b32 s{65+2*t}, {hex(p)}")
    e("v_and_b32 v9, 15, v1"); e("v_lshlrev_b32 v3, 9, v7"); e("v_lshl_add_u32 v3, v9, 4, v3")
    e("v_and_b32 v12, 1, v8"); e("v_lshlrev_b32 v12, 4, v12"); e("v_sub_u32 v12, 16, v12")
    e("v_lshlrev_b32 v8, 2, v7")
    e("v_lshlrev_b32 v11, 5, v11"); e("v_lshl_add_u32 v11, v7, 8, v11"); e(f"s_lshl_b32 {T0}, s3, 10"); e(f"v_add_u32 v11, {T0}, v11")
    e("s_waitcnt vmcnt(4)")
    for n in range(4):
        if n: e(f"v_add_u32 v9, {16*n}, v8")
        e(f"ds_bpermute_b32 v{148+n}, {'v9' if n else 'v8'}, v128")
    e("s_waitcnt lgkmcnt(0)")
    tags()
    for n in range(4):
        e(f"v_lshlrev_b32 v{148+n}, v12, v{148+n}"); e(f"v_and_b32 v{148+n}, 0xffff0000, v{148+n}")
    for n in range(4):
        e(f"s_waitcnt vmcnt({3-n})")
        for c in range(4):
            e(f"v_lshlrev_b32 v160, 16, v{132+4*n+c}"); e(f"v_and_b32 v161, 0xffff0000, v{132+4*n+c}")
            if n==0:
                e(f"v_mul_f32 v{152+2*c}, v160, v148"); e(f"v_mul_f32 v{153+2*c}, v161, v148")
            else:
                e(f"v_fmac_f32 v{152+2*c}, v160, v{148+n}"); e(f"v_fmac_f32 v{153+2*c}, v161, v{148+n}")
    for k in range(8):
        e(f"v_add_f32_dpp v{152+k}, v{152+k}, v{152+k} row_ror:8 row_mask:0xf bank_mask:0xf")
    execm("0x00ff00ff","0x00ff00ff")
    e(f"ds_write_b128 v11, v[152:155] offset:{L_QP}")
    e(f"ds_write_b128 v11, v[156:159] offset:{L_QP+16}")
    execall()
    e("v_mov_b32 v21, 1")
    e("s_waitcnt lgkmcnt(0)")
    lds_signal("v22",0,"v21")
    e("s_cmp_lg_u32 s3, 0"); e("s_cbranch_scc1 L_noq")
    e("v_lshlrev_b32 v12, 2, v1"); e("v_lshlrev_b32 v13, 3, v1")
    e(f"s_lshl_b32 {T0}, s48, 14"); e(f"s_lshr_b32 {T1}, s49, 3"); e(f"s_lshl_b32 {T1}, {T1}, 12"); e(f"s_add_u32 s60, {T0}, {T1}")
    e(f"s_and_b32 {T1}, s49, 7"); e(f"s_lshl_b32 {T1}, {T1}, 9"); e(f"s_add_u32 s60, s60, {T1}")
    lds_wait("v22",0,lambda t: e(f"s_cmp_lt_u32 {t}, 4"))
    for k in range(16): e(f"ds_read_b32 v{144+k}, v12 offset:{L_QP+256*k}")
    e(f"s_add_u32 {T1}, s60, {WS_QS}"); e(f"s_add_u32 {T0}, s60, {WS_QA}")
    e("s_mov_b32 s60, 0x05040100")
    e("s_waitcnt lgkmcnt(0)")
    for stp in (1,2,4,8):
        for k in range(0,16,2*stp): e(f"v_add_f32 v{144+k}, v{144+k}, v{144+k+stp}")
    e("v_mov_b32_dpp v146, v144 quad_perm:[1,0,3,2] row_mask:0xf bank_mask:0xf")
    e("v_mov_b32 v145, s63"); e("v_mov_b32 v147, s63")
    execm("0x55555555","0x55555555")
    if not force_slow: e(f"buffer_store_dwordx4 v[144:147], v13, s[40:43], {T0} offen")
    e(f"buffer_store_dwordx4 v[144:147], v13, s[40:43], {T1} offen sc1")
    if not kwin:
        execm(1,0)
        e("v_mov_b32 v21, 1")
        e("ds_write_b32 v22, v21 offset:4")
    execall()
    e("L_noq:")
    ST("qpub")
    e("s_barrier")
    if evenW: parity_scc()
    nv=0
    for s_ in range(2):
        for hh in range(2):
            for ee in range(8):
                of=s_*16384+ee*2048+hh*256
                r=64+64*s_+32*hh+4*ee
                throttle(nv)
                if vwin and nv>=vwin: e(f"s_waitcnt vmcnt({vwin-1})")
                nv+=1
                e(f"buffer_load_dwordx4 v[{r}:{r+3}], v3, s[24:27], s{52+of//4096} offen offset:{of%4096}{nt}")
    ST("Viss")
    e("L_join:")
    e("s_waitcnt lgkmcnt(0)")
    e("s_barrier")
    ST("P")
    e("s_cmp_lt_u32 s3, 4"); e("s_cbranch_scc1 L_vpv")
    if not earlyml:
        e("s_cmp_lg_u32 s3, 4"); e("s_cbranch_scc1 L_noml2")
        e(f"ds_read_b128 v[232:235], v18 offset:{L_MX}")
        e(f"ds_read_b128 v[236:239], v18 offset:{L_LS}")
        e("s_waitcnt lgkmcnt(0)")
        ml_compute(241,242); ml_publish()
        e("L_noml2:")
    e(f"s_lshl_b32 {T0}, s48, 9"); e(f"s_lshl_b32 {T1}, s49, 4"); e(f"s_add_u32 {T0}, {T0}, {T1}")
    e(f"s_and_b32 {T1}, s3, 3"); e(f"s_lshl_b32 {T1}, {T1}, 2"); e(f"s_add_u32 {T0}, {T0}, {T1}"); e(f"s_mul_i32 {T0}, {T0}, 896")
    e("s_mov_b32 exec_hi, 0x00ffffff")
    for n in range(4): e(f"buffer_load_dwordx4 v[{64+4*n}:{67+4*n}], v14, s[36:39], {T0} offen offset:{896*n}{nt}")
    execall()
    e("s_cmp_lg_u32 s3, 6"); e("s_cbranch_scc1 L_nopre")
    e(f"s_lshl_b32 {T0}, s48, 17"); e(f"s_lshl_b32 {T1}, s49, 12"); e(f"s_add_u32 {T0}, {T0}, {T1}"); e(f"s_add_u32 {T0}, {T0}, {WS_OB}")
    e("v_lshlrev_b32 v8, 7, v1")
    e("s_mov_b32 exec_hi, 0")
    e(f"buffer_load_dword v52, v8, s[40:43], {T0} offen sc1")
    execall()
    e("L_nopre:")
    e("s_cmp_lg_u32 s3, 5"); e("s_cbranch_scc1 L_nopre2")
    e(f"s_cmp_ge_u32 s49, {NRED}"); e("s_cbranch_scc1 L_nopre2")
    e(f"s_mul_i32 {T0}, s48, {28*4096}"); e(f"s_lshl_b32 {T1}, s49, 12"); e(f"s_add_u32 {T0}, {T0}, {T1}"); e(f"s_add_u32 {T0}, {T0}, {WS_OC}")
    e("v_lshlrev_b32 v8, 7, v1")
    e("s_mov_b32 exec_hi, 0")
    e(f"buffer_load_dword v52, v8, s[40:43], {T0} offen sc1")
    execall()
    e("L_nopre2:")
    e("s_cmp_lg_u32 s3, 7"); e("s_cbranch_scc1 L_nogp")
    e("v_bfe_u32 v8, v1, 1, 4"); e("v_lshlrev_b32 v25, 7, v8")
    e("v_lshrrev_b32 v9, 5, v1"); e("v_lshl_add_u32 v25, v9, 6, v25")
    e("v_and_b32 v9, 1, v1"); e("v_lshl_add_u32 v25, v9, 5, v25")
    e("v_lshlrev_b32 v26, 4, v8")
    e(f"s_lshl_b32 {T0}, s48, 17"); e(f"s_lshl_b32 {T1}, s49, 12"); e(f"s_add_u32 {T0}, {T0}, {T1}"); e(f"s_add_u32 s60, {T0}, {WS_OB}")
    e(f"s_lshl_b32 {T1}, s48, 1"); e(f"s_lshr_b32 {T0}, s49, 4"); e(f"s_add_u32 {T1}, {T1}, {T0}"); e(f"s_lshl_b32 {T1}, {T1}, 9"); e(f"s_add_u32 s61, {T1}, {WS_ML}")
    e("buffer_load_dwordx4 v[144:147], v26, s[40:43], s61 offen sc1")
    e("buffer_load_dwordx4 v[148:151], v26, s[40:43], s61 offen offset:256 sc1")
    e("v_lshrrev_b32 v27, 5, v1"); e("v_lshlrev_b32 v27, 5, v27"); e("v_lshl_add_u32 v27, v9, 4, v27")
    e("L_nogp:")
    e(f"s_and_b32 {T1}, s3, 3"); e(f"s_mul_i32 {T1}, {T1}, 3584"); e(f"v_add_u32 v20, {T1}, v14")
    e("s_barrier")
    e("s_cmp_eq_u32 s3, 7"); e("s_cbranch_scc1 L_wo7")
    e("s_waitcnt vmcnt(0)")
    e("s_branch L_wost")
    e("L_wo7:")
    def oload(b):
        for k_,of_ in enumerate((0,16,2048,2064)):
            e(f"buffer_load_dwordx4 v[{b+4*k_}:{b+4*k_+3}], v25, s[40:43], s60 offen offset:{of_} sc1")
    oload(128)
    e("s_waitcnt vmcnt(6)")
    e("L_wost:")
    e("s_mov_b32 exec_hi, 0x00ffffff")
    for n in range(4): e(f"ds_write_b128 v20, v[{64+4*n}:{67+4*n}] offset:{L_WO+896*n}")
    execall()
    e("v_mov_b32 v21, 1")
    e("s_waitcnt lgkmcnt(0)")
    lds_signal("v22",12,"v21")
    e("s_cmp_lg_u32 s3, 7"); e("s_cbranch_scc1 L_nob")
    e(f"s_mov_b32 {SPIN}, {spin_limit}")
    e("s_waitcnt vmcnt(4)")
    e("L_mlchk:")
    e("v_min3_u32 v152, v145, v147, v149"); e("v_max3_u32 v153, v145, v147, v149")
    e("v_min_u32 v152, v152, v151"); e("v_max_u32 v153, v153, v151")
    e(f"v_xor_b32 v152, {TAG}, v152"); e(f"v_xor_b32 v153, {TAG}, v153"); e("v_or_b32 v152, v152, v153")
    e("v_cmp_ne_u32 vcc, 0, v152")
    e("s_cbranch_vccz L_mlok")
    e(f"s_sub_u32 {SPIN}, {SPIN}, 1"); e(f"s_cmp_eq_u32 {SPIN}, 0"); e("s_cbranch_scc1 L_mlok")
    e("buffer_load_dwordx4 v[144:147], v26, s[40:43], s61 offen sc1")
    e("buffer_load_dwordx4 v[148:151], v26, s[40:43], s61 offen offset:256 sc1")
    e("s_waitcnt vmcnt(0)")
    e("s_branch L_mlchk")
    e("L_mlok:")
    def allred(op,regs_,tmps):
        for s_ in (2,4,8):
            for r in regs_: e(f"{op}_dpp v{r}, v{r}, v{r} row_ror:{s_} row_mask:0xf bank_mask:0xf")
        for r,t in zip(regs_,tmps): e(f"v_mov_b32 v{t}, v{r}")
        for r,t in zip(regs_,tmps): e(f"v_permlane16_swap_b32 v{t}, v{r}")
        for r,t in zip(regs_,tmps): e(f"{op} v{r}, v{r}, v{t}")
    e("v_max_f32 v152, v144, v148")
    allred("v_max_f32",[152],[153])
    e("v_sub_f32 v144, v144, v152"); e("v_sub_f32 v148, v148, v152")
    e("v_exp_f32 v144, v144"); e("v_exp_f32 v148, v148")
    e("v_mul_f32 v154, v144, v146"); e("v_fmac_f32 v154, v148, v150")
    allred("v_add_f32",[154],[155])
    e("v_rcp_f32 v154, v154")
    e("v_mul_f32 v144, v144, v154"); e("v_mul_f32 v148, v148, v154")
    e(f"s_mov_b32 {SPIN}, {spin_limit}")
    if stamp: e("s_mov_b32 s63, 0")
    def bcheck(b):
        e(f"v_min3_u32 v152, v{b+1}, v{b+3}, v{b+5}"); e(f"v_max3_u32 v153, v{b+1}, v{b+3}, v{b+5}")
        e(f"v_min3_u32 v152, v152, v{b+7}, v{b+9}"); e(f"v_max3_u32 v153, v153, v{b+7}, v{b+9}")
        e(f"v_min3_u32 v152, v152, v{b+11}, v{b+13}"); e(f"v_max3_u32 v153, v153, v{b+11}, v{b+13}")
        e(f"v_min_u32 v152, v152, v{b+15}"); e(f"v_max_u32 v153, v153, v{b+15}")
        for k in range(4): e(f"v_mul_f32 v{156+k}, v144, v{b+2*k}")
        e(f"v_xor_b32 v152, {TAG}, v152"); e(f"v_xor_b32 v153, {TAG}, v153"); e("v_or_b32 v152, v152, v153")
        for k in range(4): e(f"v_fmac_f32 v{156+k}, v148, v{b+8+2*k}")
        e("v_cmp_ne_u32 vcc, 0, v152")
        e("s_cbranch_vccz L_bok")
    e("L_bchk:")
    if stamp: e("s_add_u32 s63, s63, 1")
    if pipe:
        oload(164); e("s_waitcnt vmcnt(4)"); bcheck(128)
        oload(128); e("s_waitcnt vmcnt(4)"); bcheck(164)
        e(f"s_sub_u32 {SPIN}, {SPIN}, 1"); e(f"s_cmp_lg_u32 {SPIN}, 0"); e("s_cbranch_scc1 L_bchk")
    else:
        e("s_waitcnt vmcnt(0)"); bcheck(128)
        e(f"s_sub_u32 {SPIN}, {SPIN}, 1"); e(f"s_cmp_eq_u32 {SPIN}, 0"); e("s_cbranch_scc1 L_bok")
        oload(128)
        e("s_branch L_bchk")
    e("L_bok:")
    ST("Bok")
    allred("v_add_f32",[156,157,158,159],[160,161,162,163])
    e("v_cvt_pk_bf16_f32 v160, v156, v157"); e("v_cvt_pk_bf16_f32 v161, v158, v159")
    e("v_lshlrev_b32 v156, 16, v160"); e("v_and_b32 v157, 0xffff0000, v160")
    e("v_lshlrev_b32 v158, 16, v161"); e("v_and_b32 v159, 0xffff0000, v161")
    execm(3,3)
    e(f"ds_write_b128 v27, v[156:159] offset:{L_OV}")
    execall()
    e("s_branch L_nob")
    e("L_vpv:")
    e("v_lshlrev_b32 v18, 4, v16")
    e(f"ds_read_b128 v[232:235], v18 offset:{L_MX}")
    e(f"ds_read_b128 v[236:239], v18 offset:{L_LS}")
    e("ds_read_b32 v240, v22 offset:8")
    e(f"s_lshl_b32 {T1}, s3, 11"); e("v_lshlrev_b32 v20, 4, v1"); e(f"v_add_u32 v20, {T1}, v20")
    e(f"ds_read_b128 v[192:195], v20 offset:{L_P}")
    e(f"ds_read_b128 v[196:199], v20 offset:{L_P+1024}")
    e("s_waitcnt lgkmcnt(0)")
    e("v_readfirstlane_b32 s62, v240"); e("s_lshr_b32 s62, s62, 8")
    ml_compute(241,242)
    e("v_lshlrev_b32 v23, 16, v16")
    e("v_lshl_add_u32 v23, v7, 13, v23")
    e("v_bfe_u32 v8, v1, 3, 1"); e("v_lshl_add_u32 v23, v8, 5, v23")
    e("v_and_b32 v8, 2, v1"); e("v_lshl_add_u32 v23, v8, 3, v23")
    e("v_and_b32 v8, 1, v1"); e("v_lshl_add_u32 v23, v8, 6, v23")
    e("v_lshlrev_b32 v21, 2, v1")
    e(f"s_lshl_b32 {T1}, s3, 9"); e(f"v_add_u32 v24, {T1}, v21")
    e(f"s_lshl_b32 {T1}, s3, 11"); e(f"v_add_u32 v25, {T1}, v21")
    def mask(s_):
        for t in range(8):
            for u in range(4):
                e(f"v_cndmask_b32 v{200+4*t+u}, 0, v{192+4*s_+u}, s[{64+2*t}:{65+2*t}]")
    def pv(s_,hh,first):
        acc=244+4*hh
        base=64+64*s_+32*hh
        for c in range(4):
            tb=(36 if c%2==0 else 44)
            for u in range(4):
                e(f"v_perm_b32 v{tb+u}, v{base+4*(2*u+1)+c}, v{base+4*(2*u)+c}, s60")
            for u in range(4):
                e(f"v_perm_b32 v{tb+4+u}, v{base+4*(2*u+1)+c}, v{base+4*(2*u)+c}, s61")
            for par in range(2):
                t=2*c+par
                C="0" if (first and c==0 and par==0) else f"v[{acc}:{acc+3}]"
                e(f"v_mfma_f32_16x16x32_bf16 v[{acc}:{acc+3}], v[{tb+4*par}:{tb+4*par+3}], v[{200+4*t}:{203+4*t}], {C}")
    mask(0)
    e("s_waitcnt vmcnt(24)"); pv(0,0,True)
    e("s_waitcnt vmcnt(16)"); pv(0,1,True)
    mask(1)
    e("s_waitcnt vmcnt(8)"); pv(1,0,False)
    for r in range(4): e(f"ds_write_b32 v25, v{244+r} offset:{L_OR+r*256}")
    e(f"s_lshl_b32 {T0}, s48, 17"); e(f"s_lshl_b32 {T1}, s49, 7"); e(f"s_add_u32 {T0}, {T0}, {T1}"); e(f"s_add_u32 {T0}, {T0}, {WS_OB}")
    e(f"s_bfe_u32 {T1}, s3, 0x10001"); e(f"s_lshl_b32 {T1}, {T1}, 15"); e(f"s_add_u32 {T0}, {T0}, {T1}")
    e(f"s_and_b32 {T1}, s3, 1"); e(f"s_lshl_b32 {T1}, {T1}, 12"); e(f"s_add_u32 {T0}, {T0}, {T1}")
    e(f"v_mov_b32 v197, {TAG}"); e(f"v_mov_b32 v199, {TAG}")
    e("s_waitcnt vmcnt(0)")
    ST("V1done")
    pv(1,1,False)
    e("s_mov_b32 s64, 0x55555555"); e("s_mov_b32 s65, 0x55555555")
    for r in range(4): e(f"ds_write_b32 v25, v{248+r} offset:{L_OR+1024+r*256}")
    e("s_waitcnt lgkmcnt(0)")
    e("s_barrier")
    for k in range(4): e(f"ds_read_b32 v{192+k}, v24 offset:{L_OR+2048*k}")
    for k in range(4): e(f"ds_read_b32 v{200+k}, v24 offset:{L_OR+2048*k+256}")
    e("s_waitcnt lgkmcnt(0)")
    e("v_mul_f32 v252, v192, v232"); e("v_mul_f32 v254, v200, v232")
    for k in range(1,4): e(f"v_fmac_f32 v252, v{192+k}, v{232+k}"); e(f"v_fmac_f32 v254, v{200+k}, v{232+k}")
    e("v_mov_b32_dpp v192, v252 quad_perm:[1,0,3,2] row_mask:0xf bank_mask:0xf")
    e("v_mov_b32_dpp v193, v254 quad_perm:[1,0,3,2] row_mask:0xf bank_mask:0xf")
    e("v_cndmask_b32 v196, v193, v252, s[64:65]")
    e("v_cndmask_b32 v198, v254, v192, s[64:65]")
    store2(f"buffer_store_dwordx4 v[196:199], v23, s[40:43], {T0} offen")
    ST("pub")
    e("L_nob:")
    e("v_lshrrev_b32 v20, 5, v1"); e("v_mul_u32_u24 v20, 7168, v20"); e("v_and_b32 v8, 31, v1"); e("v_lshl_add_u32 v20, v8, 2, v20")
    e(f"s_lshl_b32 {T1}, s3, 7"); e(f"v_add_u32 v20, {T1}, v20")
    e("s_cmp_eq_u32 s3, 7"); e("s_cbranch_scc1 L_nowr")
    lds_wait("v22",12,lambda t: e(f"s_cmp_lt_u32 {t}, 4"))
    for r8 in range(8): e(f"ds_read_b32 v{28+r8}, v20 offset:{L_WO+896*r8}")
    e("v_lshrrev_b32 v27, 3, v1"); e("v_lshlrev_b32 v27, 12, v27")
    e("v_and_b32 v9, 7, v1"); e("v_lshl_add_u32 v27, v9, 4, v27")
    e(f"s_mul_i32 {T0}, s48, {28*4096}"); e(f"s_lshl_b32 {T1}, s3, 14"); e(f"s_add_u32 {T0}, {T0}, {T1}"); e(f"s_lshl_b32 {T1}, s49, 7"); e(f"s_add_u32 {T0}, {T0}, {T1}"); e(f"s_add_u32 {T0}, {T0}, {WS_OC}")
    e(f"v_mov_b32 v105, {TAG}"); e(f"v_mov_b32 v107, {TAG}")
    e("s_waitcnt lgkmcnt(0)")
    for r8 in range(8):
        e(f"v_lshlrev_b32 v{36+2*r8}, 16, v{28+r8}"); e(f"v_and_b32 v{37+2*r8}, 0xffff0000, v{28+r8}")
    e("L_nowr:")
    e("v_lshrrev_b32 v8, 5, v1"); e("v_lshlrev_b32 v8, 5, v8")
    e(f"s_mul_i32 s60, s48, {28*4096}"); e(f"s_lshl_b32 {T1}, s49, 12"); e(f"s_add_u32 s60, s60, {T1}"); e(f"s_add_u32 s60, s60, {WS_OC}")
    e("v_lshlrev_b32 v14, 4, v1")
    e("s_waitcnt lgkmcnt(0)")
    e("s_barrier")
    ST("B5")
    e("s_cmp_eq_u32 s3, 7"); e("s_cbranch_scc1 L_stageC")
    e(f"ds_read_b128 v[96:99], v8 offset:{L_OV}")
    e(f"ds_read_b128 v[100:103], v8 offset:{L_OV+16}")
    e("s_waitcnt lgkmcnt(1)")
    e("v_mul_f32 v104, v96, v36"); e("v_mul_f32 v106, v96, v37")
    e("v_mul_f32 v108, v97, v38"); e("v_mul_f32 v109, v97, v39")
    e("v_fmac_f32 v104, v98, v40"); e("v_fmac_f32 v106, v98, v41")
    e("v_fmac_f32 v108, v99, v42"); e("v_fmac_f32 v109, v99, v43")
    e("s_waitcnt lgkmcnt(0)")
    e("v_fmac_f32 v104, v100, v44"); e("v_fmac_f32 v106, v100, v45")
    e("v_fmac_f32 v108, v101, v46"); e("v_fmac_f32 v109, v101, v47")
    e("v_fmac_f32 v104, v102, v48"); e("v_fmac_f32 v106, v102, v49")
    e("v_fmac_f32 v108, v103, v50"); e("v_fmac_f32 v109, v103, v51")
    e("v_add_f32 v104, v104, v108"); e("v_add_f32 v106, v106, v109")
    e("v_mov_b32 v108, v104"); e("v_mov_b32 v109, v106")
    e("v_permlane32_swap_b32 v108, v104"); e("v_permlane32_swap_b32 v109, v106")
    e("v_add_f32 v104, v104, v108"); e("v_add_f32 v106, v106, v109")
    e("s_mov_b32 exec_hi, 0")
    store2(f"buffer_store_dwordx4 v[104:107], v27, s[40:43], {T0} offen")
    ST("Cpub")
    e("s_branch L_end")
    e("L_stageC:")
    e(f"s_cmp_ge_u32 s49, {NRED}"); e("s_cbranch_scc1 L_end")
    e(f"s_mov_b32 {SPIN}, {spin_limit}")
    e(f"s_lshl_b32 s61, s49, 10"); e(f"s_add_u32 s61, s61, {WS_OD}")
    e(f"s_lshl_b32 {T1}, s48, 7"); e(f"s_add_u32 {T1}, {T1}, s61")
    e(f"v_mov_b32 v105, {TAG}"); e(f"v_mov_b32 v107, {TAG}")
    def cload(b):
        for n in range(4): e(f"buffer_load_dwordx4 v[{b+4*n}:{b+4*n+3}], v14, s[40:43], s60 offen offset:{1024*n} sc1")
    def ccheck(b):
        e(f"v_min3_u32 v96, v{b+1}, v{b+3}, v{b+5}"); e(f"v_max3_u32 v97, v{b+1}, v{b+3}, v{b+5}")
        e(f"v_add_f32 v104, v{b}, v{b+4}"); e(f"v_add_f32 v106, v{b+2}, v{b+6}")
        e(f"v_min3_u32 v96, v96, v{b+7}, v{b+9}"); e(f"v_max3_u32 v97, v97, v{b+7}, v{b+9}")
        e(f"v_add_f32 v108, v{b+8}, v{b+12}"); e(f"v_add_f32 v109, v{b+10}, v{b+14}")
        e(f"v_min3_u32 v96, v96, v{b+11}, v{b+13}"); e(f"v_max3_u32 v97, v97, v{b+11}, v{b+13}")
        e("v_add_f32 v104, v104, v108"); e("v_add_f32 v106, v106, v109")
        e(f"v_min_u32 v96, v96, v{b+15}"); e(f"v_max_u32 v97, v97, v{b+15}")
        e(f"v_xor_b32 v96, {TAG}, v96"); e(f"v_xor_b32 v97, {TAG}, v97"); e("v_or_b32 v96, v96, v97")
        e("v_add_f32_dpp v104, v104, v104 row_ror:8 row_mask:0xf bank_mask:0xf")
        e("v_add_f32_dpp v106, v106, v106 row_ror:8 row_mask:0xf bank_mask:0xf")
        e("v_cmp_ne_u32 vcc, 0, v96")
        e("s_cbranch_vccz L_cok")
    if pipe:
        cload(128)
        e("L_cpoll:")
        cload(164); e("s_waitcnt vmcnt(4)"); ccheck(128)
        cload(128); e("s_waitcnt vmcnt(4)"); ccheck(164)
    else:
        e("L_cpoll:")
        cload(128); e("s_waitcnt vmcnt(0)"); ccheck(128)
    e(f"s_sub_u32 {SPIN}, {SPIN}, 1"); e(f"s_cmp_lg_u32 {SPIN}, 0"); e("s_cbranch_scc1 L_cpoll")
    e("L_cok:")
    ST("Cok")
    def red1632(a,b):
        for sw in ("16","32"):
            e(f"v_mov_b32 v96, v{a}"); e(f"v_mov_b32 v97, v{b}")
            e(f"v_permlane{sw}_swap_b32 v96, v{a}"); e(f"v_permlane{sw}_swap_b32 v97, v{b}")
            e(f"v_add_f32 v{a}, v{a}, v96"); e(f"v_add_f32 v{b}, v{b}, v97")
    red1632(104,106)
    execm("0xff",0)
    e(f"buffer_store_dwordx4 v[104:107], v14, s[40:43], {T1} offen sc1")
    execall()
    e(f"s_and_b32 {T1}, s49, 7"); e(f"s_cmp_lg_u32 {T1}, s48"); e("s_cbranch_scc1 L_end")
    e(f"s_mov_b32 {SPIN}, {spin_limit}")
    def dload(b): e(f"buffer_load_dwordx4 v[{b}:{b+3}], v14, s[40:43], s61 offen sc1")
    def dcheck(b):
        e(f"v_xor_b32 v96, {TAG}, v{b+1}"); e(f"v_xor_b32 v97, {TAG}, v{b+3}"); e("v_or_b32 v96, v96, v97")
        e(f"v_add_f32_dpp v112, v{b}, v{b} row_ror:8 row_mask:0xf bank_mask:0xf")
        e(f"v_add_f32_dpp v113, v{b+2}, v{b+2} row_ror:8 row_mask:0xf bank_mask:0xf")
        e("v_cmp_ne_u32 vcc, 0, v96")
        e("s_cbranch_vccz L_dok")
    if pipe:
        dload(180)
        e("L_dpoll:")
        dload(184); e("s_waitcnt vmcnt(1)"); dcheck(180)
        dload(180); e("s_waitcnt vmcnt(1)"); dcheck(184)
    else:
        e("L_dpoll:")
        dload(180); e("s_waitcnt vmcnt(0)"); dcheck(180)
    e(f"s_sub_u32 {SPIN}, {SPIN}, 1"); e(f"s_cmp_lg_u32 {SPIN}, 0"); e("s_cbranch_scc1 L_dpoll")
    e("L_dok:")
    ST("Dok")
    red1632(112,113)
    e("v_cvt_pk_bf16_f32 v98, v112, v113")
    e(f"s_lshl_b32 {T1}, s49, 5")
    e("v_lshlrev_b32 v99, 2, v1")
    execm("0xff",0)
    e(f"buffer_store_dword v98, v99, s[44:47], {T1} offen")
    e("s_cmp_lg_u32 s49, 0"); e("s_cbranch_scc1 L_end")
    e("s_mov_b32 exec_lo, 1")
    e("v_mov_b32 v100, s50"); e("v_mov_b32 v101, 0")
    e("buffer_store_dword v100, v101, s[40:43], 0 offen sc1")
    e("L_end:")
    if stamp:
        ST("end")
        n=nst[0]
        execall()
        e("s_waitcnt lgkmcnt(0)")
        e(f"s_lshl_b32 {T0}, s2, 3"); e(f"s_add_u32 {T0}, {T0}, s3"); e(f"s_lshl_b32 {T0}, {T0}, 6"); e(f"s_add_u32 {T0}, {T0}, {WS_STAMP}")
        for i in range(16):
            e(f"v_mov_b32 v{96+i}, s{SREG(i)}" if i<n else (f"v_mov_b32 v{96+i}, s63" if i==15 else f"v_mov_b32 v{96+i}, 0"))
        e("v_mov_b32 v112, 0")
        execm(1,0)
        for q in range(4):
            e(f"buffer_store_dwordx4 v[{96+4*q}:{99+4*q}], v112, s[40:43], {T0} offen offset:{16*q}")
    e("L_done:"); e("s_endpgm")
    e('.section .rodata,"a"'); e(".p2align 6"); e(f".amdhsa_kernel {NAME}")
    e("  .amdhsa_next_free_vgpr 256"); e(f"  .amdhsa_next_free_sgpr 102"); e("  .amdhsa_accum_offset 256")
    e("  .amdhsa_group_segment_fixed_size 0"); e("  .amdhsa_kernarg_size 64"); e("  .amdhsa_user_sgpr_count 2")
    e("  .amdhsa_user_sgpr_kernarg_segment_ptr 1"); e("  .amdhsa_system_sgpr_workgroup_id_x 1"); e(".end_amdhsa_kernel")
    if stamp: open("stampnames.txt","w").write(",".join(names))
    return "\n".join(pad(o,verbose=True))+"\n"

STAMPS=["entry","Kiss","qrdy","soft","qpub","Viss","P","V1done","pub","Bok","B5","Cpub","Cok","Dok","end"]
if __name__=="__main__":
    from build import build
    def mk(nm,**kw):
        open(nm+".s","w").write(gen(**kw)); build(nm+".s",nm+".co")
    mk("k20"); mk("k20slow",force_slow=True); mk("k20s",stamp=STAMPS)
```
